```python
import torch

def _softmax(x, axis=-1):
    return torch.softmax(x, dim=axis)
def _gelu(x):
    return torch.nn.functional.gelu(x, approximate="tanh")
def _silu(x):
    return torch.nn.functional.silu(x)
def _sigmoid(x):
    return torch.sigmoid(x)
def _layernorm(x, axis=-1, eps=1e-5):
    m = x.mean(dim=axis, keepdim=True)
    v = x.var(dim=axis, keepdim=True, unbiased=False)
    return (x - m) / torch.sqrt(v + eps)
def _scatter_add(tgt, idx, src, axis=0):
    return tgt.clone().index_add_(axis, idx, src)
def _segment_sum(src, seg, n):
    out = torch.zeros((n,) + src.shape[1:], dtype=src.dtype)
    return out.index_add_(0, seg, src)
def _pad(x, pw):
    flat = tuple(v for pair in reversed(pw) for v in pair)
    return torch.nn.functional.pad(x, flat)

kernel_name = 'sequential_preLN__linear_kernel_hedgehog__dense_activation_relu__prompt'

def setup_inputs():

    _w = (lambda a: (lambda t: t.to(torch.bfloat16) if t.is_floating_point() else t)(torch.as_tensor(a)))
    def _A_setup():
        B, S, D, H = 1, 2048, 640, 32
        Dh = D // H
        return {
            "x": _w((lambda *s: torch.randn(*s, dtype=torch.bfloat16) * 0.05)(B, S, D)),
            "wqkv": _w((lambda *s: torch.randn(*s, dtype=torch.bfloat16) * 0.2)(D, 3 * D)),
            "w_phi": _w((lambda *s: torch.randn(*s, dtype=torch.bfloat16) * 0.2)(H, Dh, Dh) * (Dh ** -0.5)),
            "wo": _w((lambda *s: torch.randn(*s, dtype=torch.bfloat16) * 0.05)(D, D)),
        }
    _A_in = _A_setup()

    def _B_setup():
        B, S, D, Dff = 1, 2048, 640, 1728
        return {
            "x": _w((lambda *s: torch.randn(*s, dtype=torch.bfloat16) * 0.05)(B, S, D)),
            "w1": _w((lambda *s: torch.randn(*s, dtype=torch.bfloat16) * 0.05)(D, Dff)),
            "w2": _w((lambda *s: torch.randn(*s, dtype=torch.bfloat16) * 0.05)(Dff, D)),
        }
    _B_in = _B_setup()

    return {
        "A_x": _A_in["x"],
        "A_wqkv": _A_in["wqkv"],
        "A_w_phi": _A_in["w_phi"],
        "A_wo": _A_in["wo"],
        "B_x": _B_in["x"],
        "B_w1": _B_in["w1"],
        "B_w2": _B_in["w2"],
    }

def reference(A_x, A_wqkv, A_w_phi, A_wo, B_x, B_w1, B_w2):
    def _A_ref(x, wqkv, w_phi, wo):
        B, S, D = x.shape
        H = 32; Dh = D // H
        qkv = (lambda x, *d: x.permute(*d))((x @ wqkv).reshape(B, S, 3, H, Dh), 2, 0, 3, 1, 4)
        q, k, v = qkv[0], qkv[1], qkv[2]
        pq = torch.einsum("bhsd,hdf->bhsf", q, w_phi)
        pk = torch.einsum("bhsd,hdf->bhsf", k, w_phi)
        phi_q = torch.concatenate([_softmax(pq, axis=-1), _softmax(-pq, axis=-1)], axis=-1)
        phi_k = torch.concatenate([_softmax(pk, axis=-1), _softmax(-pk, axis=-1)], axis=-1)
        kv = torch.einsum("bhsf,bhsd->bhfd", phi_k, v)
        z  = torch.einsum("bhsf->bhf", phi_k)
        num = torch.einsum("bhqf,bhfd->bhqd", phi_q, kv)
        den = torch.einsum("bhqf,bhf->bhq", phi_q, z)[..., None] + 1e-6
        o = num / den
        return (lambda x, *d: x.permute(*d))(o, 0, 2, 1, 3).reshape(B, S, D) @ wo

    def _B_ref(x, w1, w2):
        h = torch.einsum("bsd,df->bsf", x, w1)
        zero = torch.zeros_like(h)
        h = torch.maximum(h, zero)
        return torch.einsum("bsf,fd->bsd", h, w2)

    x = A_x
    h = x + _A_ref(_layernorm(x, axis=-1), A_wqkv, A_w_phi, A_wo)
    h2 = h + _B_ref(_layernorm(h, axis=-1), B_w1, B_w2)
    return h2
```

```python
import re

REG_RE = re.compile(r'\b([vas])(\d+)\b|\b([vas])\[(\d+):(\d+)\]|\b(vcc|exec|m0|scc)\b')

def regs_of(tok):
    out = set()
    for m in REG_RE.finditer(tok):
        if m.group(1):
            out.add((m.group(1), int(m.group(2))))
        elif m.group(3):
            for i in range(int(m.group(4)), int(m.group(5)) + 1):
                out.add((m.group(3), i))
        else:
            out.add((m.group(6), 0))
    return out

TRANS = ("v_exp_f32", "v_log_f32", "v_rcp_f32", "v_rsq_f32", "v_sqrt_f32", "v_sin_f32", "v_cos_f32")

class Ins:
    __slots__ = ("text", "op", "rd", "wr", "kind", "passes", "srcc", "srcab", "dst", "wide_store", "data", "lds_dma", "dpp")
    def __init__(self, text):
        self.text = text
        t = text.split(";")[0].strip()
        parts = t.split(None, 1)
        self.op = op = parts[0]
        rest = parts[1] if len(parts) > 1 else ""
        ops = [o.strip() for o in rest.split(",")] if rest else []
        self.rd = set(); self.wr = set(); self.kind = "other"; self.passes = 0
        self.srcc = set(); self.srcab = set(); self.dst = set(); self.wide_store = False; self.data = set()
        self.lds_dma = False; self.dpp = ("row_" in rest or "quad_perm" in rest or "_dpp" in op)
        R = regs_of
        if op.startswith("v_mfma"):
            self.kind = "mfma"
            self.passes = 8 if "32x32x16" in op else 4
            self.dst = R(ops[0]); self.wr = set(self.dst)
            self.srcab = R(ops[1]) | R(ops[2]); self.srcc = R(ops[3])
            self.rd = self.srcab | self.srcc
        elif op.startswith("v_"):
            self.kind = "valu"
            if op.startswith("v_cmp"):
                self.wr = R(ops[0]); self.rd = set().union(*[R(o) for o in ops[1:]])
            elif op.startswith("v_permlane") and "swap" in op:
                self.wr = R(ops[0]) | R(ops[1]); self.rd = set(self.wr)
            elif op.startswith(("v_add_co", "v_sub_co", "v_addc_co", "v_subb_co")):
                self.wr = R(ops[0]) | R(ops[1]); self.rd = set().union(*[R(o) for o in ops[2:]])
            else:
                self.wr = R(ops[0]); self.rd = set().union(*[R(o) for o in ops[1:]]) if len(ops) > 1 else set()
                if op.startswith(("v_fmac", "v_dot2c", "v_writelane")) or self.dpp:
                    self.rd |= self.wr
                if op.startswith("v_cndmask") and len(ops) == 3:
                    self.rd.add(("vcc", 0))
        elif op.startswith(("buffer_", "global_")):
            self.kind = "vmem"
            if op in ("buffer_wbl2", "buffer_inv"):
                pass
            elif "store" in op or "atomic" in op:
                if op.startswith("buffer_"):
                    self.data = R(ops[0])
                else:
                    self.data = R(ops[1])
                self.rd = set().union(*[R(o) for o in ops])
                self.wide_store = ("x3" in op or "x4" in op)
            elif re.search(r'\blds\b', rest):
                self.lds_dma = True
                self.rd = set().union(*[R(o) for o in ops]) | {("m0", 0)}
            else:
                self.wr = R(ops[0]); self.rd = set().union(*[R(o) for o in ops[1:]])
        elif op.startswith("ds_"):
            self.kind = "ds"
            if op.startswith(("ds_write", "ds_add")):
                self.rd = set().union(*[R(o) for o in ops])
            else:
                self.wr = R(ops[0]); self.rd = set().union(*[R(o) for o in ops[1:]])
                if "d16" in op:
                    self.rd |= self.wr
        elif op.startswith("s_"):
            self.kind = "salu"
            if op.startswith(("s_cmp", "s_cbranch", "s_branch", "s_waitcnt", "s_barrier", "s_nop", "s_sleep", "s_endpgm", "s_setprio", "s_setpc")):
                self.rd = set().union(*[R(o) for o in ops]) if ops else set()
            else:
                self.wr = R(ops[0]) if ops else set()
                self.rd = set().union(*[R(o) for o in ops[1:]]) if len(ops) > 1 else set()
    def states(self):
        if self.op == "s_nop":
            return int(self.text.split(";")[0].split()[1], 0) + 1
        return 1

def vec(s):
    return {x for x in s if x[0] in "va"}
def sca(s):
    return {x for x in s if x[0] == "s" or x[0] == "vcc"}

def need(p, c):
    n = 0
    if p.kind == "valu":
        w = vec(p.wr)
        if c.kind == "mfma" and (w & c.rd): n = max(n, 2)
        if c.kind == "valu":
            if c.op.startswith("v_permlane") and (w & c.rd): n = max(n, 2)
            if c.dpp and (w & c.rd): n = max(n, 2)
            if c.op.startswith(("v_readfirstlane", "v_readlane")) and (w & c.rd): n = max(n, 1)
        if p.op in TRANS and (w & c.rd) and c.op not in TRANS: n = max(n, 1)
        if p.op in TRANS and (w & c.rd): n = max(n, 1)
        if p.op.startswith("v_dot2"):
            if (w & (c.rd | c.wr)):
                if c.op == p.op and c.kind == "valu":
                    toks = [o.strip() for o in c.text.split(";")[0].split(None, 1)[1].split(",")]
                    ab = regs_of(toks[1]) | regs_of(toks[2])
                    if w & ab: n = max(n, 3)
                else:
                    n = max(n, 3)
        sw = sca(p.wr)
        if sw:
            if c.kind in ("valu", "mfma") and (sw & c.rd): n = max(n, 4 if c.op.startswith(("v_readlane", "v_writelane")) else 2)
            if c.kind == "vmem" and (sw & c.rd): n = max(n, 5)
            if c.kind == "salu" and (sw & c.rd): n = max(n, 1)
            if c.op.startswith("s_cbranch_vcc") and ("vcc", 0) in sw: n = max(n, 1)
    if p.kind == "mfma":
        far = {4: 8, 8: 12}[p.passes]
        if c.kind == "mfma":
            if p.dst & c.srcab: n = max(n, far)
            if p.dst & c.srcc:
                if not (c.srcc == p.dst and c.passes == p.passes): n = max(n, {4: 6, 8: 10}[p.passes])
            if (p.dst & c.dst) and not (c.srcc == p.dst and c.passes == p.passes): n = max(n, {4: 6, 8: 10}[p.passes])
        elif c.kind in ("valu", "vmem", "ds"):
            if p.dst & (c.rd | c.wr): n = max(n, far)
            if c.kind == "valu" and (p.srcc & c.wr): n = max(n, {4: 3, 8: 7}[p.passes])
    if p.kind == "salu" and ("m0", 0) in p.wr and (c.lds_dma): n = max(n, 1)
    if p.kind == "vmem" and p.wide_store and (p.data & c.wr): n = max(n, 2)
    return n

class Asm:
    def __init__(self):
        self.items = []
        self.uid = 0
    def __call__(self, text):
        for line in text.split("\n"):
            line = line.strip()
            if not line: continue
            if line.startswith(";") or line.startswith(".") or line.endswith(":"):
                self.items.append(line)
            else:
                self.items.append(Ins(line))
    def label(self, base):
        self.uid += 1
        return f"L_{base}_{self.uid}"
    def render(self):
        out = []
        hist = []
        nins = 0
        for it in self.items:
            if isinstance(it, str):
                out.append(it if (it.endswith(":") or it.startswith(".")) else "  " + it)
                continue
            dist = 0; req = 0
            for p in reversed(hist):
                r = need(p, it) - dist
                if r > req: req = r
                dist += p.states()
                if dist >= 20: break
            while req > 0:
                k = min(req, 16)
                nop = Ins(f"s_nop {k-1}")
                hist.append(nop); out.append(f"  s_nop {k-1}"); req -= k; nins += 1
            hist.append(it); out.append("  " + it.text); nins += 1
            if len(hist) > 40: hist = hist[-40:]
        return "\n".join(out) + "\n"
```

```python
import sys
sys.path.insert(0, "dev")
from asmlib import Asm

NAME = "sequential_preLN__linear_kernel_hedgehog__dense_activation_relu__prompt"

XN  = 0
WQ  = XN + 2621440
WO  = WQ + 2621440
W2  = WO + 819200
KVP = W2 + 2211840
OF  = KVP + 256 * 6784
HF  = OF + 2621440
H1F = HF + 2621440
W1  = H1F + 7077888
FLG = W1 + 108 * 20480
FLG = (FLG + 4095) // 4096 * 4096
STAMP = 64 << 20
WS_BYTES = 268435456

SWS, SX, SOUT, SSRC, SW1 = "s[28:31]", "s[32:35]", "s[36:39]", "s[40:43]", "s[44:47]"
sWAVE, sR, sC, sNONCE = "s48", "s49", "s50", "s51"

class Cfg:
    fused = False
    stamps = False
    dbg = False

def vr(b, n): return f"v[{b}:{b+n-1}]"
def ar(b, n): return f"a[{b}:{b+n-1}]"

def prologue(A, exit_label):
    A(f"""
    s_cmp_ge_u32 s2, 256
    s_cbranch_scc1 {exit_label}
    s_load_dwordx16 s[8:23], s[0:1], 0
    s_load_dwordx4 s[24:27], s[0:1], 64
    v_and_b32 v1, 63, v0
    v_lshrrev_b32 v2, 6, v0
    s_and_b32 s52, s2, 7
    s_lshr_b32 s53, s2, 3
    v_readfirstlane_b32 {sWAVE}, v2
    s_lshl_b32 {sR}, s52, 1
    s_and_b32 s54, s53, 1
    s_add_u32 {sR}, {sR}, s54
    s_lshr_b32 {sC}, s53, 1
    v_lshlrev_b32 v2, 4, v1
    s_mov_b32 s30, {WS_BYTES}
    s_mov_b32 s31, 0x20000
    s_mov_b32 s34, 2621440
    s_mov_b32 s35, 0x20000
    s_mov_b32 s38, 2621440
    s_mov_b32 s39, 0x20000
    s_mov_b32 s43, 0x20000
    s_mov_b32 s46, {108*20480}
    s_mov_b32 s47, 0x20000
    s_mov_b32 s84, 0x3fb8aa3b
    s_mov_b32 s85, 0x3fb8aa3b
    s_waitcnt lgkmcnt(0)
    s_mov_b32 s28, s26
    s_mov_b32 s29, s27
    s_mov_b32 s32, s8
    s_mov_b32 s33, s9
    s_mov_b32 s36, s22
    s_mov_b32 s37, s23
    s_add_u32 s44, s26, {W1}
    s_addc_u32 s45, s27, 0
    """)

DBGA = 128 << 20
def dump(A, regs, slot):
    A(f"""
    s_lshl_b32 s90, s2, 2
    s_add_u32 s90, s90, {sWAVE}
    s_lshl_b32 s90, s90, 14
    s_add_u32 s90, s90, {DBGA + slot*(16<<20)}
    v_lshlrev_b32 v5, 2, v1
    """)
    for k, r in enumerate(regs):
        A(f"s_add_u32 s91, s90, {k*256}")
        A(f"buffer_store_dword v{r}, v5, {SWS}, s91 offen")
    A("s_waitcnt vmcnt(0)")

def stamp(A, cfg, k):
    if cfg.stamps:
        A(f"s_memrealtime s[{64+2*k}:{65+2*k}]") if False else None

def side_params(A, sj):
    A(f"""
    s_cmp_lt_u32 {sj}, 540
    s_cselect_b32 s40, s18, s20
    s_cselect_b32 s41, s19, s21
    s_mov_b32 s42, 2211840
    s_mov_b32 s60, 1280
    s_cselect_b32 s60, 3456, s60
    s_mov_b32 s63, 55296
    s_cselect_b32 s63, 20480, s63
    s_cselect_b32 s55, 0, 540
    s_mov_b32 s56, 1214
    s_cselect_b32 s56, 3277, s56
    s_cselect_b32 s57, 20, 54
    s_mov_b32 s62, {W2}
    s_cselect_b32 s62, {W1}, s62
    s_sub_u32 s55, {sj}, s55
    s_mul_i32 s58, s55, s56
    s_lshr_b32 s58, s58, 16
    s_mul_i32 s59, s58, s57
    s_sub_u32 s59, s55, s59
    s_lshl_b32 s55, s60, 5
    s_mul_i32 s61, s59, s55
    s_lshl_b32 s55, s58, 7
    s_add_u32 s61, s61, s55
    s_lshl_b32 s55, s63, 2
    s_mul_i32 s55, s55, s58
    s_add_u32 s62, s62, s55
    s_lshl_b32 s55, s59, 10
    s_add_u32 s62, s62, s55
    """)

def dma_rows(A, n, vtmp, lds_off):
    A(f"""
    v_mad_u32_u24 v{vtmp}, v3, s60, v4
    s_lshl_b32 s55, s60, 3
    s_add_u32 m0, s64, {lds_off}
    """)
    for i in range(n):
        A(f"buffer_load_dwordx4 v{vtmp}, {SSRC}, s61 offen lds")
        if i + 1 < n:
            A("s_add_u32 s61, s61, s55\ns_add_u32 m0, m0, 1024")

def side_process(A, SC, lds_off):
    A("v_mad_u32_u24 v9, v6, s63, v7")
    for g in range(4):
        A(f"ds_read_b64_tr_b16 v[{16+4*g}:{17+4*g}], v5 offset:{lds_off + 4*g*128}")
        A(f"ds_read_b64_tr_b16 v[{18+4*g}:{19+4*g}], v5 offset:{lds_off + (16+4*g)*128}")
    for g in range(4):
        A(f"s_waitcnt lgkmcnt({6-2*g})")
        A(f"buffer_store_dwordx4 v[{16+4*g}:{19+4*g}], v9, {SWS}, s62 offen offset:{g*256}{SC}")

def phase_P(A, cfg):
    SC = " sc1" if cfg.fused else ""
    lLN, lCRIT, lNOX, lWO, lEND = (A.label(x) for x in ("ln", "critdone", "noextra", "wo", "pend"))
    A(f"""
    ; ---- phase P ----
    v_lshrrev_b32 v3, 3, v1
    v_bfe_u32 v8, v1, 4, 1
    v_lshlrev_b32 v8, 2, v8
    v_and_b32 v4, 7, v1
    v_xor_b32 v4, v4, v8
    v_lshlrev_b32 v4, 4, v4
    s_mul_i32 s64, {sWAVE}, 20480
    v_lshrrev_b32 v6, 4, v1
    v_and_b32 v7, 15, v1
    v_and_b32 v8, 3, v1
    v_lshlrev_b32 v8, 3, v8
    v_lshl_add_u32 v8, v6, 5, v8
    v_bfe_u32 v9, v1, 3, 1
    v_lshlrev_b32 v9, 6, v9
    v_xor_b32 v8, v8, v9
    v_bfe_u32 v9, v1, 2, 2
    v_lshl_add_u32 v5, v9, 7, v8
    v_add_u32 v5, s64, v5
    v_lshlrev_b32 v7, 4, v7
    s_lshl_b32 s65, s2, 2
    s_add_u32 s65, s65, {sWAVE}
    s_cmp_ge_u32 {sWAVE}, 2
    s_cbranch_scc1 {lLN}
    s_lshl_b32 s66, s2, 1
    s_add_u32 s66, s66, {sWAVE}
    s_min_u32 s66, s66, 479
    s_lshr_b32 s67, s66, 4
    s_and_b32 s68, s66, 15
    s_mov_b32 s40, s10
    s_mov_b32 s41, s11
    s_mov_b32 s42, 2457600
    s_mov_b32 s60, 3840
    s_mul_i32 s61, s68, {40*3840}
    s_lshl_b32 s55, s67, 7
    s_add_u32 s61, s61, s55
    """)
    dma_rows(A, 5, 10, 0)
    side_params(A, "s65")
    dma_rows(A, 4, 11, 5120)
    A(f"""
    s_mul_i32 s69, s67, 6554
    s_lshr_b32 s69, s69, 16
    s_mul_i32 s55, s69, 10
    s_sub_u32 s55, s67, s55
    s_lshl_b32 s55, s55, 6
    v_add_u32 v12, s55, v1
    v_mul_u32_u24 v13, 3277, v12
    v_lshrrev_b32 v13, 16, v13
    v_mul_u32_u24 v14, 20, v13
    v_sub_u32 v14, v12, v14
    s_cmp_eq_u32 s69, 0
    s_cselect_b32 s70, 122880, 0
    s_mov_b32 s71, 3072
    s_cselect_b32 s71, 1024, s71
    s_cmp_eq_u32 s69, 2
    s_cselect_b32 s70, 1024, s70
    s_lshl_b32 s72, s69, 2
    s_sub_u32 s72, s72, 16
    v_add_u32 v15, s72, v14
    v_cmp_gt_u32 vcc, 16, v14
    v_mov_b32 v32, 2048
    v_mov_b32 v33, s70
    v_mov_b32 v34, 3072
    v_mov_b32 v35, s71
    v_cndmask_b32 v15, v15, v14, vcc
    v_cndmask_b32 v32, v32, v33, vcc
    v_cndmask_b32 v34, v34, v35, vcc
    v_lshrrev_b32 v33, 2, v15
    v_lshlrev_b32 v33, 3, v33
    v_and_b32 v15, 3, v15
    v_add_u32 v33, v33, v15
    v_and_b32 v15, 1, v13
    v_lshl_add_u32 v33, v15, 2, v33
    v_lshl_add_u32 v32, v33, 4, v32
    v_lshrrev_b32 v13, 1, v13
    s_mov_b32 s55, 163840
    v_mad_u32_u24 v32, v13, s55, v32
    s_mul_i32 s73, s68, 5
    s_waitcnt vmcnt(4)
    """)
    for g in range(5):
        A(f"ds_read_b64_tr_b16 v[{36+4*g}:{37+4*g}], v5 offset:{8*g*128}")
        A(f"ds_read_b64_tr_b16 v[{38+4*g}:{39+4*g}], v5 offset:{(8*g+4)*128}")
    for g in range(5):
        A(f"""
        s_add_u32 s55, s73, {g}
        s_lshr_b32 s56, s55, 1
        s_and_b32 s55, s55, 1
        s_lshl_b32 s55, s55, 9
        s_add_u32 s55, s55, {WQ}
        v_mad_u32_u24 v33, v34, s56, v32
        s_waitcnt lgkmcnt({8-2*g})
        buffer_store_dwordx4 v[{36+4*g}:{39+4*g}], v33, {SWS}, s55 offen{SC}
        """)
    A(f"s_branch {lCRIT}")
    A(f"""
    {lLN}:
    s_lshl_b32 s66, {sR}, 7
    s_lshl_b32 s55, {sC}, 3
    s_add_u32 s66, s66, s55
    s_lshl_b32 s55, {sWAVE}, 2
    s_add_u32 s66, s66, s55
    s_sub_u32 s66, s66, 8
    s_mul_i32 s67, s66, 1280
    v_and_b32 v12, 3, v1
    v_lshrrev_b32 v13, 2, v1
    v_mul_u32_u24 v14, 1280, v12
    v_lshl_add_u32 v14, v13, 4, v14
    """)
    for i in range(5):
        A(f"buffer_load_dwordx4 v[{36+4*i}:{39+4*i}], v14, {SX}, s67 offen offset:{i*256}")
    side_params(A, "s65")
    dma_rows(A, 4, 11, 5120)
    A(f"""
    v_lshrrev_b32 v14, 1, v13
    v_lshlrev_b32 v14, 10, v14
    v_and_b32 v13, 1, v13
    v_lshl_add_u32 v14, v13, 9, v14
    v_lshl_add_u32 v14, v12, 4, v14
    s_lshr_b32 s55, s66, 5
    s_mul_i32 s67, s55, 40960
    s_and_b32 s55, s66, 31
    s_lshl_b32 s55, s55, 4
    s_add_u32 s67, s67, s55
    s_mov_b32 s68, 0x3f803f80
    v_mov_b32 v32, 0
    v_mov_b32 v33, 0
    v_mov_b32 v34, 0
    v_mov_b32 v35, 0
    s_waitcnt vmcnt(4)
    """)
    for i in range(0, 20, 2):
        A(f"v_dot2c_f32_bf16 v32, s68, v{36+i}")
        A(f"v_dot2c_f32_bf16 v33, v{36+i}, v{36+i}")
        A(f"v_dot2c_f32_bf16 v34, s68, v{37+i}")
        A(f"v_dot2c_f32_bf16 v35, v{37+i}, v{37+i}")
    A("""
    v_add_f32 v32, v32, v34
    v_add_f32 v33, v33, v35
    v_add_f32_dpp v32, v32, v32 row_ror:4 row_mask:0xf bank_mask:0xf
    v_add_f32_dpp v33, v33, v33 row_ror:4 row_mask:0xf bank_mask:0xf
    v_add_f32_dpp v32, v32, v32 row_ror:8 row_mask:0xf bank_mask:0xf
    v_add_f32_dpp v33, v33, v33 row_ror:8 row_mask:0xf bank_mask:0xf
    """)
    allreduce_16_32(A, [(32, 34), (33, 35)])
    stats_finish(A, 32, 33, 34)
    for i in range(20):
        A(f"""
        v_lshlrev_b32 v60, 16, v{36+i}
        v_and_b32 v61, 0xffff0000, v{36+i}
        v_pk_fma_f32 v[60:61], v[60:61], v[32:33], v[32:33] op_sel:[0,0,1] op_sel_hi:[1,0,1]
        v_cvt_pk_bf16_f32 v{36+i}, v60, v61
        """)
        if i % 4 == 3:
            A(f"buffer_store_dwordx4 v[{36+i-3}:{36+i}], v14, {SWS}, s67 offen{SC}")
            A("s_add_u32 s67, s67, 8192")
    A(f"{lCRIT}:")
    if cfg.fused:
        signal(A, cfg, 0)
    else:
        A("s_waitcnt vmcnt(5)")
    A(f"""
    s_mov_b32 s74, s62
    s_mov_b32 s75, s63
    s_mov_b32 s76, 0
    s_cmp_lg_u32 {sWAVE}, 3
    s_cbranch_scc1 {lNOX}
    s_cmp_ge_u32 s2, 136
    s_cbranch_scc1 {lNOX}
    s_cmp_ge_u32 s2, 56
    s_cbranch_scc1 {lWO}
    s_mov_b32 s76, 1
    s_add_u32 s65, s2, 1024
    """)
    side_params(A, "s65")
    dma_rows(A, 4, 11, 9216)
    A(f"""
    s_branch {lNOX}
    {lWO}:
    s_mov_b32 s76, 2
    s_sub_u32 s65, s2, 56
    s_lshr_b32 s66, s65, 3
    s_and_b32 s67, s65, 7
    s_mov_b32 s40, s14
    s_mov_b32 s41, s15
    s_mov_b32 s42, 819200
    s_mov_b32 s60, 1280
    s_mul_i32 s61, s67, {80*1280}
    s_lshl_b32 s55, s66, 7
    s_add_u32 s61, s61, s55
    s_mul_i32 s62, s66, {4*20480}
    s_mul_i32 s55, s67, 2560
    s_add_u32 s62, s62, s55
    s_add_u32 s62, s62, {WO}
    s_mov_b32 s63, 20480
    """)
    dma_rows(A, 10, 11, 9216)
    A(f"""
    {lNOX}:
    s_mov_b32 s77, s62
    s_mov_b32 s78, s63
    s_mov_b32 s62, s74
    s_mov_b32 s63, s75
    """)
    side_process(A, SC, 5120)
    lX2 = A.label("x2")
    A(f"""
    s_cmp_eq_u32 s76, 0
    s_cbranch_scc1 {lEND}
    s_mov_b32 s62, s77
    s_mov_b32 s63, s78
    s_waitcnt vmcnt(0)
    s_cmp_eq_u32 s76, 2
    s_cbranch_scc1 {lX2}
    """)
    side_process(A, SC, 9216)
    A(f"s_branch {lEND}\n{lX2}:")
    A("v_mad_u32_u24 v9, v6, s63, v7")
    rho = lambda b, e: (2 * (e // 20) + b) * 20 + e % 20
    for half in range(2):
        for k in range(5):
            chi = half * 5 + k
            b, q = chi // 5, chi % 5
            A(f"ds_read_b64_tr_b16 v[{16+4*k}:{17+4*k}], v5 offset:{9216 + rho(b, 8*q)*128}")
            A(f"ds_read_b64_tr_b16 v[{18+4*k}:{19+4*k}], v5 offset:{9216 + rho(b, 8*q+4)*128}")
        for k in range(5):
            chi = half * 5 + k
            A(f"s_waitcnt lgkmcnt({8-2*k})")
            A(f"buffer_store_dwordx4 v[{16+4*k}:{19+4*k}], v9, {SWS}, s62 offen offset:{chi*256}{SC}")
    A(f"{lEND}:")

def allreduce_16_32(A, pairs):
    for sw in ("v_permlane16_swap_b32", "v_permlane32_swap_b32"):
        for v, t in pairs: A(f"v_mov_b32 v{t}, v{v}")
        for v, t in pairs: A(f"{sw} v{v}, v{t}")
        for v, t in pairs: A(f"v_add_f32 v{v}, v{v}, v{t}")

def stats_finish(A, vs, vq, vt):
    A(f"""
    v_mul_f32 v{vs}, 0x3acccccd, v{vs}
    v_mul_f32 v{vq}, 0x3acccccd, v{vq}
    v_fma_f32 v{vt}, -v{vs}, v{vs}, v{vq}
    v_max_f32 v{vt}, 0, v{vt}
    v_add_f32 v{vt}, 0x3727c5ac, v{vt}
    v_rsq_f32 v{vt}, v{vt}
    v_mul_f32 v{vq}, -v{vs}, v{vt}
    v_mov_b32 v{vs}, v{vt}
    """)

def nonce_setup(A):
    l1, l2, l3 = A.label("nn"), A.label("np"), A.label("nd")
    A(f"""
    s_mov_b32 {sNONCE}, 0
    s_cmp_lg_u32 {sWAVE}, 0
    s_cbranch_scc1 {l3}
    v_mov_b32 v8, 0
    s_cmp_lg_u32 s2, 0
    s_cbranch_scc1 {l1}
    s_memrealtime s[56:57]
    s_waitcnt lgkmcnt(0)
    s_or_b32 s56, s56, 1
    v_mov_b32 v9, s56
    s_mov_b64 exec, 1
    global_store_dword v8, v9, s[24:25] sc1
    s_mov_b64 exec, -1
    {l1}:
    s_mov_b32 s57, 0
    {l2}:
    global_load_dword v9, v8, s[24:25] sc1
    s_add_u32 s57, s57, 1
    s_waitcnt vmcnt(0)
    v_readfirstlane_b32 {sNONCE}, v9
    s_cmp_ge_u32 s57, 0x40000
    s_cbranch_scc1 {l3}
    s_cmp_eq_u32 {sNONCE}, 0
    s_cbranch_scc1 {l2}
    {l3}:
    """)

def group_flag_addr(A, hop, by_col):
    g, m = (sC, sR) if by_col else (sR, sC)
    A(f"""
    s_lshl_b32 s58, {g}, 7
    s_add_u32 s58, s58, {FLG + hop*8192}
    s_lshl_b32 s59, {m}, 2
    """)

def signal_group(A, hop, by_col, vm=0):
    l = A.label("sig")
    A(f"s_waitcnt vmcnt({vm})\ns_barrier")
    A(f"s_cmp_lg_u32 {sWAVE}, 0\ns_cbranch_scc1 {l}")
    group_flag_addr(A, hop, by_col)
    A(f"""
    v_mov_b32 v6, s59
    v_mov_b32 v7, {sNONCE}
    s_mov_b64 exec, 1
    buffer_store_dword v7, v6, {SWS}, s58 offen sc1
    s_mov_b64 exec, -1
    {l}:
    """)

def wait_group(A, hop, by_col):
    l, lp, ld = A.label("wt"), A.label("poll"), A.label("pd")
    A(f"s_cmp_lg_u32 {sWAVE}, 0\ns_cbranch_scc1 {l}")
    group_flag_addr(A, hop, by_col)
    A(f"""
    v_lshlrev_b32 v6, 2, v1
    s_mov_b64 exec, 0xffff
    s_mov_b32 s57, 0
    {lp}:
    buffer_load_dword v7, v6, {SWS}, s58 offen sc1
    s_add_u32 s57, s57, 1
    s_waitcnt vmcnt(0)
    v_cmp_ne_u32 vcc, {sNONCE}, v7
    s_cmp_ge_u32 s57, 0x40000
    s_cbranch_scc1 {ld}
    s_cbranch_vccnz {lp}
    {ld}:
    s_mov_b64 exec, -1
    {l}:
    s_barrier
    """)

WM, WLf = 8, 20
ACK, ACV, ACL, ACQ = 32, 48, 64, 80
WB0, WB1 = 96, 144
U = 96
PP, PL = 108, 124
EP, EN = 140, 160
PH = 180
VV = 200
QL = 212
TM = 214
PKV_LDS = 88 * 1024
KVF_LDS = 150 * 1024

def wphi_frags(A):
    A(f"""
    s_mov_b32 s40, s12
    s_mov_b32 s41, s13
    s_mov_b32 s42, 25600
    s_lshl_b32 s56, {sWAVE}, 12
    s_add_u32 s56, s56, {PKV_LDS}
    s_mul_i32 s55, {sC}, 1600
    s_mov_b32 m0, s56
    v_mov_b32 v96, 0
    v_mov_b32 v97, 0
    v_mov_b32 v98, 0
    v_mov_b32 v99, 0
    buffer_load_dwordx4 v2, {SSRC}, s55 offen lds
    buffer_load_dwordx4 v2, {SSRC}, s55 offen offset:1024 lds
    v_add_u32 v100, s56, v2
    ds_write_b128 v100, v[96:99] offset:2048
    v_and_b32 v101, 31, v1
    v_lshrrev_b32 v102, 5, v1
    v_bfe_u32 v103, v1, 2, 1
    v_lshrrev_b32 v104, 3, v101
    v_and_b32 v105, 3, v1
    v_lshl_add_u32 v104, v104, 2, v105
    v_mul_u32_u24 v105, 800, v102
    v_lshl_add_u32 v105, v104, 1, v105
    v_mov_b32 v106, 2048
    v_cmp_eq_u32 vcc, v102, v103
    v_add_u32 v107, 32, v105
    v_cndmask_b32 v105, v106, v105, vcc
    v_cndmask_b32 v107, v106, v107, vcc
    v_cmp_gt_u32 vcc, 8, v101
    v_add_u32 v105, s56, v105
    v_cndmask_b32 v107, v106, v107, vcc
    v_add_u32 v107, s56, v107
    v_mov_b32 v{WM+10}, 0
    v_mov_b32 v{WM+11}, 0
    v_mov_b32 v{WLf+10}, 0
    v_mov_b32 v{WLf+11}, 0
    s_waitcnt vmcnt(0) lgkmcnt(0)
    """)
    for d in range(20):
        op = "ds_read_u16_d16_hi" if d % 2 else "ds_read_u16"
        A(f"{op} v{108 + d}, v105 offset:{d*40}")
        A(f"{op} v{128 + d}, v107 offset:{d*40}")
        if d % 6 == 5: A("s_waitcnt lgkmcnt(4)")
    A("s_waitcnt lgkmcnt(0)")
    for i in range(10):
        A(f"v_or_b32 v{WM+i}, v{108+2*i}, v{109+2*i}")
        A(f"v_or_b32 v{WLf+i}, v{128+2*i}, v{129+2*i}")

def softmax_routine(A):
    A("L_smx:\ns_nop 1")
    for u in range(3):
        A(f"v_mfma_f32_32x32x16_bf16 {vr(PP,16)}, {vr(WM+4*u,4)}, {vr(U+4*u,4)}, {'0' if u==0 else vr(PP,16)}")
    for u in range(3):
        A(f"v_mfma_f32_32x32x16_bf16 {vr(PL,16)}, {vr(WLf+4*u,4)}, {vr(U+4*u,4)}, {'0' if u==0 else vr(PL,16)}")
    p = [PP + i for i in range(20)]
    for op, t in (("v_max3_f32", TM), ("v_min3_f32", TM + 4)):
        for k in range(4):
            A(f"{op} v{t+k}, v{p[4*k]}, v{p[4*k+1]}, v{p[4*k+2]}")
        for k in range(4):
            A(f"{op} v{t+k}, v{t+k}, v{p[4*k+3]}, v{p[16+k]}")
        A(f"{op} v{t}, v{t}, v{t+1}, v{t+2}")
        A(f"{op.replace('3_','_')} v{t}, v{t}, v{t+3}")
    A(f"v_mul_f32 v{TM+8}, s84, v{TM}")
    A(f"v_mul_f32 v{TM+10}, s84, v{TM+4}")
    for i in range(0, 20, 2):
        A(f"v_pk_fma_f32 {vr(EP+i,2)}, {vr(PP+i,2)}, s[84:85], {vr(TM+8,2)} op_sel_hi:[1,1,0] neg_lo:[0,0,1] neg_hi:[0,0,1]")
    for i in range(0, 20, 2):
        A(f"v_pk_fma_f32 {vr(EN+i,2)}, {vr(PP+i,2)}, s[84:85], {vr(TM+10,2)} op_sel_hi:[1,1,0] neg_lo:[1,0,0] neg_hi:[1,0,0]")
    for i in range(40):
        A(f"v_exp_f32 v{EP+i}, v{EP+i}")
    for E, t in ((EP, TM), (EN, TM + 6)):
        A(f"v_pk_add_f32 {vr(t,2)}, {vr(E,2)}, {vr(E+2,2)}")
        A(f"v_pk_add_f32 {vr(t+2,2)}, {vr(E+4,2)}, {vr(E+6,2)}")
        A(f"v_pk_add_f32 {vr(t+4,2)}, {vr(E+8,2)}, {vr(E+10,2)}")
    for E, t in ((EP, TM), (EN, TM + 6)):
        A(f"v_pk_add_f32 {vr(t,2)}, {vr(t,2)}, {vr(E+12,2)}")
        A(f"v_pk_add_f32 {vr(t+2,2)}, {vr(t+2,2)}, {vr(E+14,2)}")
        A(f"v_pk_add_f32 {vr(t+4,2)}, {vr(t+4,2)}, {vr(E+16,2)}")
    for E, t in ((EP, TM), (EN, TM + 6)):
        A(f"v_pk_add_f32 {vr(t,2)}, {vr(t,2)}, {vr(E+18,2)}")
        A(f"v_pk_add_f32 {vr(t+2,2)}, {vr(t+2,2)}, {vr(t+4,2)}")
    for E, t in ((EP, TM), (EN, TM + 6)):
        A(f"v_pk_add_f32 {vr(t,2)}, {vr(t,2)}, {vr(t+2,2)}")
    for E, t in ((EP, TM), (EN, TM + 6)):
        A(f"v_add_f32 v{t}, v{t}, v{t+1}")
    for E, t in ((EP, TM), (EN, TM + 6)):
        A(f"v_rcp_f32 v{t}, v{t}")
    for E, t in ((EP, TM), (EN, TM + 6)):
        for i in range(0, 20, 2):
            A(f"v_pk_mul_f32 {vr(E+i,2)}, {vr(E+i,2)}, {vr(t,2)} op_sel_hi:[1,0]")
    for i in range(20):
        A(f"v_cvt_pk_bf16_f32 v{PH+i}, v{EP+2*i}, v{EP+2*i+1}")
    A("s_setpc_b64 s[80:81]")

def call_smx(A):
    A("s_call_b64 s[80:81], L_smx\ns_nop 1")

def lds_base(off):
    return ("v2", "v3", "v4")[off >> 16], off & 0xffff

def phase_A(A, cfg):
    SC = " sc1" if cfg.fused else ""
    A("; ---- phase A ----")
    A(f"""
    v_add_u32 v3, 0x10000, v2
    v_add_u32 v4, 0x20000, v2
    s_mul_i32 s60, {sC}, 163840
    s_lshl_b32 s55, {sWAVE}, 10
    s_add_u32 s60, s60, s55
    s_add_u32 s60, s60, {WQ}
    s_mov_b32 m0, s55
    s_lshl_b32 s61, {sR}, 2
    s_add_u32 s61, s61, {sWAVE}
    s_mul_i32 s61, s61, 40960
    """)
    def wload():
        A(f"buffer_load_dwordx4 v2, {SWS}, s60 offen{SC} lds\ns_add_u32 s60, s60, 4096\ns_add_u32 m0, m0, 4096")
    for blk in range(10):
        for i in range(3): wload()
        for i in range(4):
            s = 4 * blk + i
            A(f"buffer_load_dwordx4 {ar(4*s,4)}, v2, {SWS}, s61 offen offset:{i*1024}{SC}")
        A("s_add_u32 s61, s61, 4096")
    for i in range(10): wload()
    accs = (ACK, ACV, ACL)
    def reads(blk):
        buf = WB0 if blk % 2 == 0 else WB1
        out = []
        for j in range(12):
            b, o = lds_base((12 * blk + j) * 1024)
            out.append(f"ds_read_b128 {vr(buf+4*j,4)}, {b} offset:{o}")
        return out
    def sync(blk):
        n = 80 - 7 * (blk + 1)
        A(f"s_waitcnt vmcnt({min(n,63)})\ns_barrier")
    sync(0)
    for r in reads(0): A(r)
    for blk in range(10):
        buf = WB0 if blk % 2 == 0 else WB1
        nxt = []
        if blk + 1 < 10:
            A("s_waitcnt lgkmcnt(0)")
            sync(blk + 1)
            nxt = reads(blk + 1)
        else:
            A("s_waitcnt lgkmcnt(0)\ns_barrier")
        for j in range(12):
            s = 4 * blk + j // 3
            acc = accs[j % 3]
            A(f"v_mfma_f32_32x32x16_bf16 {vr(acc,16)}, {vr(buf+4*j,4)}, {ar(4*s,4)}, {'0' if s==0 else vr(acc,16)}")
            if nxt: A(nxt[j])
    if cfg.dbg: dump(A, list(range(ACK, ACK+48)) + list(range(WM, WM+12)), 0)
    for i in range(8): A(f"v_cvt_pk_bf16_f32 v{U+i}, v{ACK+2*i}, v{ACK+2*i+1}")
    for i in range(8): A(f"v_cvt_pk_bf16_f32 v{VV+i}, v{ACV+2*i}, v{ACV+2*i+1}")
    A(f"""
    v_cvt_pk_bf16_f32 v{U+8}, v{ACL+4}, v{ACL+5}
    v_cvt_pk_bf16_f32 v{U+9}, v{ACL+6}, v{ACL+7}
    v_mov_b32 v{U+10}, 0
    v_mov_b32 v{U+11}, 0
    v_cvt_pk_bf16_f32 v{QL}, v{ACL}, v{ACL+1}
    v_cvt_pk_bf16_f32 v{QL+1}, v{ACL+2}, v{ACL+3}
    v_cvt_pk_bf16_f32 v{VV+8}, v{ACL+8}, v{ACL+9}
    v_cvt_pk_bf16_f32 v{VV+9}, v{ACL+10}, v{ACL+11}
    v_mov_b32 v{VV+10}, 0x3f80
    v_mov_b32 v{VV+11}, 0
    """)
    call_smx(A)
    if cfg.dbg: dump(A, list(range(PP, PP+20)) + list(range(PH, PH+20)) + list(range(VV, VV+12)), 1)
    A(f"""
    v_and_b32 v32, 31, v1
    v_lshrrev_b32 v33, 5, v1
    s_lshl_b32 s55, {sWAVE}, 5
    v_add_u32 v34, s55, v32
    v_lshl_add_u32 v34, v33, 7, v34
    v_lshlrev_b32 v34, 7, v34
    v_add_u32 v34, {PKV_LDS}, v34
    v_bfe_u32 v35, v1, 1, 1
    v_lshlrev_b32 v35, 2, v35
    v_bfe_u32 v36, v1, 2, 1
    v_lshl_add_u32 v35, v36, 1, v35
    v_and_b32 v36, 1, v1
    v_add_u32 v35, v35, v36
    v_lshlrev_b32 v35, 4, v35
    """)
    for ch in range(8):
        src = PH + 4 * ch if ch < 5 else VV + 4 * (ch - 5)
        A(f"v_xor_b32 v36, {ch*16}, v35\nv_add_u32 v36, v34, v36\nds_write_b128 v36, {vr(src,4)}")
    A(f"""
    s_lshr_b32 s55, {sWAVE}, 1
    s_and_b32 s56, {sWAVE}, 1
    s_lshl_b32 s57, s55, 14
    s_add_u32 s57, s57, {PKV_LDS}
    v_bfe_u32 v32, v1, 2, 2
    v_lshl_add_u32 v32, v33, 3, v32
    v_lshlrev_b32 v32, 7, v32
    v_add_u32 v32, s57, v32
    v_and_b32 v34, 1, v1
    v_lshl_add_u32 v32, v34, 3, v32
    v_bfe_u32 v34, v1, 4, 1
    v_bfe_u32 v35, v1, 1, 1
    v_lshl_add_u32 v34, v34, 1, v35
    v_bfe_u32 v35, v1, 3, 1
    v_lshlrev_b32 v35, 2, v35
    v_bfe_u32 v36, v1, 2, 1
    v_add_u32 v35, v35, v36
    s_lshl_b32 s58, s56, 2
    v_add_u32 v36, s58, v34
    v_add_u32 v37, 5, v34
    v_min_u32 v37, 7, v37
    v_xor_b32 v36, v36, v35
    v_xor_b32 v37, v37, v35
    v_lshl_add_u32 v38, v36, 4, v32
    v_lshl_add_u32 v40, v37, 4, v32
    v_xor_b32 v36, 2, v36
    v_xor_b32 v37, 2, v37
    v_lshl_add_u32 v39, v36, 4, v32
    v_lshl_add_u32 v41, v37, 4, v32
    s_waitcnt lgkmcnt(0)
    s_barrier
    """)
    for s in range(8):
        b = 96 + 8 * s
        A(f"ds_read_b64_tr_b16 {vr(b,2)}, v38 offset:{s*2048}")
        A(f"ds_read_b64_tr_b16 {vr(b+2,2)}, v39 offset:{s*2048+512}")
        A(f"ds_read_b64_tr_b16 {vr(b+4,2)}, v40 offset:{s*2048}")
        A(f"ds_read_b64_tr_b16 {vr(b+6,2)}, v41 offset:{s*2048+512}")
        if s >= 2:
            t = s - 2
            A("s_waitcnt lgkmcnt(8)")
            A(f"v_mfma_f32_32x32x16_bf16 {vr(48,16)}, {vr(96+8*t,4)}, {vr(100+8*t,4)}, {'0' if t==0 else vr(48,16)}")
    for t in (6, 7):
        A(f"s_waitcnt lgkmcnt({4 if t==6 else 0})")
        A(f"v_mfma_f32_32x32x16_bf16 {vr(48,16)}, {vr(96+8*t,4)}, {vr(100+8*t,4)}, {vr(48,16)}")
    lsk = A.label("kvst")
    A(f"""
    s_lshl_b32 s57, {sC}, 4
    s_add_u32 s57, s57, {sR}
    s_mul_i32 s57, s57, 6784
    s_mul_i32 s58, s55, 3360
    s_add_u32 s57, s57, s58
    s_mul_i32 s58, s56, {8*336}
    s_add_u32 s57, s57, s58
    s_add_u32 s57, s57, {KVP}
    v_and_b32 v32, 31, v1
    v_mul_u32_u24 v34, 336, v33
    v_lshl_add_u32 v34, v32, 4, v34
    v_cmp_gt_u32 vcc, 21, v32
    s_and_saveexec_b64 s[86:87], vcc
    buffer_store_dwordx4 {vr(48,4)}, v34, {SWS}, s57 offen sc1
    s_cmp_eq_u32 s56, 1
    s_cbranch_scc1 {lsk}
    buffer_store_dwordx4 {vr(52,4)}, v34, {SWS}, s57 offen offset:672 sc1
    buffer_store_dwordx4 {vr(56,4)}, v34, {SWS}, s57 offen offset:1344 sc1
    buffer_store_dwordx4 {vr(60,4)}, v34, {SWS}, s57 offen offset:2016 sc1
    {lsk}:
    s_mov_b64 exec, s[86:87]
    """)
    signal_group(A, 1, True)
    for s in range(8):
        b, o = lds_base((120 + s) * 1024)
        A(f"ds_read_b128 {vr(WB1+4*(s%12),4)}, {b} offset:{o}")
    for s in range(40):
        A(f"s_waitcnt lgkmcnt({min(7, 39-s)})")
        A(f"v_mfma_f32_32x32x16_bf16 {vr(ACQ,16)}, {vr(WB1+4*(s%12),4)}, {ar(4*s,4)}, {'0' if s==0 else vr(ACQ,16)}")
        if s + 8 < 40:
            b, o = lds_base((120 + s + 8) * 1024)
            A(f"ds_read_b128 {vr(WB1+4*((s+8)%12),4)}, {b} offset:{o}")
    A("s_barrier")
    A(f"""
    v_mov_b32 v32, 0
    v_mov_b32 v33, 0
    v_mov_b32 v34, 0
    v_mov_b32 v35, 0
    v_lshlrev_b32 v36, 4, v0
    v_add_u32 v36, {KVF_LDS}, v36
    ds_write_b128 v36, v[32:35]
    ds_write_b128 v36, v[32:35] offset:4096
    s_mov_b64 exec, 0xffffffff
    v_lshlrev_b32 v36, 3, v0
    v_lshl_add_u32 v36, v1, 3, v36
    v_add_u32 v36, {KVF_LDS}, v36
    ds_write_b128 v36, v[32:35] offset:8192
    s_mov_b64 exec, -1
    """)
    for i in range(8): A(f"v_cvt_pk_bf16_f32 v{U+i}, v{ACQ+2*i}, v{ACQ+2*i+1}")
    A(f"""
    v_mov_b32 v{U+8}, v{QL}
    v_mov_b32 v{U+9}, v{QL+1}
    v_mov_b32 v{U+10}, 0
    v_mov_b32 v{U+11}, 0
    """)
    call_smx(A)
    A(f"""
    v_mul_u32_u24 v32, 3121, v0
    v_lshrrev_b32 v32, 16, v32
    v_mul_u32_u24 v33, 21, v32
    v_sub_u32 v33, v0, v33
    v_mul_u32_u24 v34, 672, v32
    v_lshl_add_u32 v34, v33, 4, v34
    v_cmp_le_u32 vcc, 5, v32
    v_subrev_u32 v35, 5, v32
    v_cndmask_b32 v35, v32, v35, vcc
    v_cndmask_b32 v36, 0, 1, vcc
    v_lshrrev_b32 v37, 4, v33
    v_and_b32 v38, 15, v33
    v_mad_u32_u24 v35, v37, 5, v35
    v_lshlrev_b32 v35, 10, v35
    v_lshrrev_b32 v37, 2, v38
    v_lshlrev_b32 v37, 3, v37
    v_and_b32 v38, 3, v38
    v_add_u32 v37, v37, v38
    v_mad_u32_u24 v37, v36, 36, v37
    v_lshl_add_u32 v35, v37, 4, v35
    v_add_u32 v35, {KVF_LDS}, v35
    s_mul_i32 s60, {sC}, {16*6784}
    s_add_u32 s60, s60, {KVP}
    s_waitcnt lgkmcnt(0)
    """)
    wait_group(A, 1, True)
    lsk = A.label("red")
    A(f"""
    v_cmp_gt_u32 vcc, 210, v0
    s_and_saveexec_b64 s[86:87], vcc
    s_cbranch_execz {lsk}
    """)
    RB = 40
    for p in range(16):
        A(f"buffer_load_dwordx4 {vr(RB+8*p,4)}, v34, {SWS}, s60 offen sc1")
        A(f"buffer_load_dwordx4 {vr(RB+8*p+4,4)}, v34, {SWS}, s60 offen offset:336 sc1")
        if p < 15: A("s_add_u32 s60, s60, 6784")
    for p in range(1, 16):
        A(f"s_waitcnt vmcnt({30-2*p})")
        for j in range(0, 8, 2):
            A(f"v_pk_add_f32 {vr(RB+j,2)}, {vr(RB+j,2)}, {vr(RB+8*p+j,2)}")
    for j in range(4): A(f"v_cvt_pk_bf16_f32 v{RB+j}, v{RB+2*j}, v{RB+2*j+1}")
    A(f"""
    ds_write_b128 v35, {vr(RB,4)}
    {lsk}:
    s_mov_b64 exec, s[86:87]
    s_waitcnt lgkmcnt(0)
    s_barrier
    """)
    b, o = lds_base(KVF_LDS)
    for i in range(10): A(f"ds_read_b128 {vr(40+4*i,4)}, {b} offset:{o + i*1024}")
    A(f"""
    v_and_b32 v32, 15, v1
    v_bfe_u32 v33, v1, 4, 1
    v_lshrrev_b32 v34, 5, v1
    v_mul_u32_u24 v33, 20480, v33
    v_mul_u32_u24 v34, 1280, v34
    v_lshl_add_u32 v32, v32, 4, v33
    v_add_u32 v32, v32, v34
    s_lshl_b32 s60, {sR}, 2
    s_add_u32 s60, s60, {sWAVE}
    s_mul_i32 s60, s60, 40960
    s_lshr_b32 s55, {sC}, 1
    s_mul_i32 s55, s55, 2560
    s_add_u32 s60, s60, s55
    s_add_u32 s60, s60, {OF}
    """)
    for tau in range(2):
        for s5 in range(5):
            i = tau * 5 + s5
            A(f"s_waitcnt lgkmcnt({9-i})")
            A(f"v_mfma_f32_32x32x16_bf16 {vr(96+16*tau,16)}, {vr(40+4*i,4)}, {vr(PH+4*s5,4)}, {'0' if s5==0 else vr(96+16*tau,16)}")
    A(f"""
    v_add_f32 v34, 0x358637bd, v{96+20}
    v_rcp_f32 v34, v34
    """)
    for i in range(0, 20, 2):
        A(f"v_pk_mul_f32 {vr(96+i,2)}, {vr(96+i,2)}, v[34:35] op_sel_hi:[1,0]")
    for i in range(10): A(f"v_cvt_pk_bf16_f32 v{40+i}, v{96+2*i}, v{97+2*i}")
    store_parity(A, sC, 40, 5, "v32", "s60", 256, SC)

def store_parity(A, par, P, ntile, voff, soff, stride, SC, limit=None):
    lo, le = A.label("odd"), A.label("se")
    A(f"s_and_b32 s55, {par}, 1\ns_cmp_eq_u32 s55, 1\ns_cbranch_scc1 {lo}")
    h = ntile // 2
    for k in range(h):
        A(f"buffer_store_dwordx4 {vr(P+4*k,4)}, {voff}, {SWS}, {soff} offen offset:{k*stride}{SC}")
    A(f"buffer_store_dwordx2 {vr(P+4*h,2)}, {voff}, {SWS}, {soff} offen offset:{h*stride}{SC}")
    A(f"s_branch {le}\n{lo}:")
    return_odd = []
    base = h if limit != "shift0" else 0
    A(f"buffer_store_dwordx2 {vr(P,2)}, {voff}, {SWS}, {soff} offen offset:{h*stride+8}{SC}")
    for k in range(h):
        o = (h + 1 + k) * stride
        if o >= 4096:
            A(f"s_add_u32 s56, {soff}, 4096")
            A(f"buffer_store_dwordx4 {vr(P+2+4*k,4)}, {voff}, {SWS}, s56 offen offset:{o-4096}{SC}")
        else:
            A(f"buffer_store_dwordx4 {vr(P+2+4*k,4)}, {voff}, {SWS}, {soff} offen offset:{o}{SC}")
    A(f"{le}:")

HK = 246
BRED_LDS = 100 * 1024
def phase_B(A, cfg):
    SC = " sc1" if cfg.fused else ""
    WOF, OFR, ACC, XR = 0, 8, 88, 168
    A("; ---- phase B ----")
    A(f"""
    s_lshr_b32 s62, {sC}, 1
    s_and_b32 s63, {sC}, 1
    s_mul_i32 s60, s62, {5*20480}
    s_mul_i32 s55, {sWAVE}, 5120
    s_add_u32 s60, s60, s55
    s_add_u32 s60, s60, {WO}
    """)
    for T in range(5):
        for st in range(4):
            A(f"buffer_load_dwordx4 {ar(WOF+4*(5*T+st),4)}, v2, {SWS}, s60 offen offset:{st*1024}{SC}")
        A(f"s_add_u32 s55, s60, 4096\nbuffer_load_dwordx4 {ar(WOF+4*(5*T+4),4)}, v2, {SWS}, s55 offen{SC}")
        if T < 4: A("s_add_u32 s60, s60, 20480")
    A(f"""
    s_lshl_b32 s64, {sR}, 3
    s_lshl_b32 s55, s63, 2
    s_add_u32 s64, s64, s55
    s_add_u32 s65, s64, {sWAVE}
    s_mul_i32 s61, s65, 20480
    s_mul_i32 s55, s62, 160
    s_add_u32 s61, s61, s55
    v_and_b32 v6, 15, v1
    v_lshrrev_b32 v7, 4, v1
    v_mul_u32_u24 v6, 1280, v6
    v_lshl_add_u32 v6, v7, 3, v6
    """)
    for T in range(5):
        A(f"buffer_load_dwordx2 {vr(XR+2*T,2)}, v6, {SX}, s61 offen offset:{T*32}")
    if cfg.fused: wait_group(A, 2, False)
    for i in range(4):
        A(f"""
        s_add_u32 s55, {sWAVE}, {i}
        s_and_b32 s55, s55, 3
        s_add_u32 s55, s55, s64
        s_mul_i32 s{66+i}, s55, 20480
        s_mul_i32 s55, {sWAVE}, 5120
        s_add_u32 s{66+i}, s{66+i}, s55
        s_add_u32 s{66+i}, s{66+i}, {OF}
        """)
    for st in range(5):
        for i in range(4):
            if st < 4:
                A(f"buffer_load_dwordx4 {vr(OFR+4*(4*st+i),4)}, v2, {SWS}, s{66+i} offen offset:{st*1024}{SC}")
            else:
                A(f"s_add_u32 s55, s{66+i}, 4096\nbuffer_load_dwordx4 {vr(OFR+4*(4*st+i),4)}, v2, {SWS}, s55 offen{SC}")
    for st in range(5):
        for i in range(4):
            A(f"s_waitcnt vmcnt({19-4*st-i})")
            for T in range(5):
                acc = vr(ACC + 4 * (5 * i + T), 4)
                A(f"v_mfma_f32_16x16x32_bf16 {acc}, {ar(WOF+4*(5*T+st),4)}, {vr(OFR+4*(4*st+i),4)}, {'0' if st==0 else acc}")
    for i in range(1, 4):
        A(f"""
        s_add_u32 s55, {sWAVE}, {i}
        s_and_b32 s55, s55, 3
        s_mul_i32 s55, s55, 15360
        s_add_u32 s55, s55, {BRED_LDS + (i-1)*5120}
        v_add_u32 v7, s55, v2
        """)
        for T in range(5):
            A(f"ds_write_b128 v7, {vr(ACC+4*(5*i+T),4)} offset:{T*1024}")
    A(f"""
    s_mul_i32 s55, {sWAVE}, 15360
    s_add_u32 s55, s55, {BRED_LDS}
    v_add_u32 v7, s55, v2
    s_waitcnt lgkmcnt(0)
    s_barrier
    """)
    for k in range(15): A(f"ds_read_b128 {vr(8+4*k,4)}, v7 offset:{k*1024}")
    for T in range(5):
        A(f"v_lshlrev_b32 v68, 16, v{XR+2*T}\nv_and_b32 v69, 0xffff0000, v{XR+2*T}")
        A(f"v_lshlrev_b32 v70, 16, v{XR+2*T+1}\nv_and_b32 v71, 0xffff0000, v{XR+2*T+1}")
        A(f"v_pk_add_f32 {vr(ACC+4*T,2)}, {vr(ACC+4*T,2)}, v[68:69]")
        A(f"v_pk_add_f32 {vr(ACC+4*T+2,2)}, {vr(ACC+4*T+2,2)}, v[70:71]")
    for k in range(15):
        T = k % 5
        A(f"s_waitcnt lgkmcnt({14-k})")
        A(f"v_pk_add_f32 {vr(ACC+4*T,2)}, {vr(ACC+4*T,2)}, {vr(8+4*k,2)}")
        A(f"v_pk_add_f32 {vr(ACC+4*T+2,2)}, {vr(ACC+4*T+2,2)}, {vr(10+4*k,2)}")
    for i in range(10): A(f"v_cvt_pk_bf16_f32 v{HK+i}, v{ACC+2*i}, v{ACC+2*i+1}")
    A(f"""
    s_mul_i32 s60, s65, 20480
    s_lshr_b32 s55, s62, 1
    s_mul_i32 s55, s55, 5120
    s_add_u32 s60, s60, s55
    s_add_u32 s60, s60, {HF}
    """)
    store_parity(A, "s62", HK, 5, "v2", "s60", 1024, SC)

def w1_dma(A, SC, t0, t1):
    A(f"""
    s_mul_i32 s60, {sC}, {7*20480}
    s_lshl_b32 s55, {sWAVE}, 10
    s_add_u32 s55, s55, {t0*20480}
    s_add_u32 s60, s60, s55
    s_mov_b32 m0, s55
    """)
    for i in range((t1 - t0) * 5):
        A(f"s_nop 0\nbuffer_load_dwordx4 v2, {SW1}, s60 offen{SC} lds" if i == 0 else f"buffer_load_dwordx4 v2, {SW1}, s60 offen{SC} lds")
        A("s_add_u32 s60, s60, 4096\ns_add_u32 m0, m0, 4096")

CS_A = 224
def colsum_w1(A, t0, t1):
    A("v_mov_b32 v8, 0x3f803f80\nv_mov_b32 v9, 0x3f803f80\nv_mov_b32 v10, 0x3f803f80\nv_mov_b32 v11, 0x3f803f80")
    seq = [(T, s) for s in range(20) for T in range(t0, t1)]
    NB = 12
    def rd(k):
        T, s = seq[k]
        b, o = lds_base(T * 20480 + s * 1024)
        A(f"ds_read_b128 {vr(12+4*(k%NB),4)}, {b} offset:{o}")
    for k in range(8): rd(k)
    for k, (T, s) in enumerate(seq):
        A(f"s_waitcnt lgkmcnt({min(7, len(seq)-1-k)})")
        acc = ar(CS_A + 4 * T, 4)
        A(f"v_mfma_f32_16x16x32_bf16 {acc}, {vr(12+4*(k%NB),4)}, v[8:11], {'0' if s==0 else acc}")
        if k + 8 < len(seq): rd(k + 8)

def phase_C(A, cfg):
    SC = " sc1" if cfg.fused else ""
    HFR, ACC, ST, WBA = 8, 168, 224, 192
    A("; ---- phase C ----")
    if not cfg.fused:
        A("v_add_u32 v3, 0x10000, v2\nv_add_u32 v4, 0x20000, v2")
        w1_dma(A, SC, 0, 7)
        A("s_waitcnt vmcnt(0)\ns_barrier")
        colsum_w1(A, 0, 7)
    A(f"""
    s_lshl_b32 s64, {sR}, 3
    s_lshl_b32 s55, {sWAVE}, 1
    s_add_u32 s64, s64, s55
    s_mul_i32 s60, s64, 20480
    s_add_u32 s60, s60, {HF}
    s_add_u32 s61, s60, 20480
    """)
    for s in range(20):
        for i in range(2):
            A(f"buffer_load_dwordx4 {vr(HFR+8*s+4*i,4)}, v2, {SWS}, s{60+i} offen offset:{(s%4)*1024}{SC}")
        if s % 4 == 3 and s < 19: A("s_add_u32 s60, s60, 4096\ns_add_u32 s61, s61, 4096")
    for i in range(8): A(f"v_mov_b32 v{ST+i}, 0")
    A("s_mov_b32 s62, 0x3f803f80")
    seq = [(s, T) for s in range(20) for T in range(7)]
    NB = 8
    def rd(k):
        s, T = seq[k]
        b, o = lds_base(T * 20480 + s * 1024)
        A(f"ds_read_b128 {ar(WBA+4*(k%NB),4)}, {b} offset:{o}")
    for k in range(6): rd(k)
    for k, (s, T) in enumerate(seq):
        if T == 0: A(f"s_waitcnt vmcnt({38-2*s})")
        A(f"s_waitcnt lgkmcnt({min(5, len(seq)-1-k)})")
        for i in range(2):
            acc = vr(ACC + 4 * (7 * i + T), 4)
            A(f"v_mfma_f32_16x16x32_bf16 {acc}, {ar(WBA+4*(k%NB),4)}, {vr(HFR+8*s+4*i,4)}, {'0' if s==0 else acc}")
            if i == 0 and k + 6 < len(seq): rd(k + 6)
        for q in range(16):
            if q * 7 // 16 == T:
                reg = HFR + 8 * s + q // 2
                tile = (q // 2) // 4
                par = (q // 2) & 1
                if q % 2 == 0: A(f"v_dot2c_f32_bf16 v{ST+4*tile+2*par}, s62, v{reg}")
                else:          A(f"v_dot2c_f32_bf16 v{ST+4*tile+2*par+1}, v{reg}, v{reg}")
    for t in range(2):
        A(f"v_add_f32 v{ST+4*t}, v{ST+4*t}, v{ST+4*t+2}\nv_add_f32 v{ST+4*t+1}, v{ST+4*t+1}, v{ST+4*t+3}")
    allreduce_16_32(A, [(ST, ST + 2), (ST + 1, ST + 3), (ST + 4, ST + 6), (ST + 5, ST + 7)])
    stats_finish(A, ST, ST + 1, ST + 2)
    stats_finish(A, ST + 4, ST + 5, ST + 6)
    for i in range(28): A(f"v_accvgpr_read_b32 v{8+i}, a{CS_A+i}")
    for i in range(2):
        st = vr(ST + 4 * i, 2)
        for T in range(7):
            for h in range(2):
                a = ACC + 4 * (7 * i + T) + 2 * h
                A(f"v_pk_mul_f32 {vr(a,2)}, {vr(a,2)}, {st} op_sel_hi:[1,0]")
                A(f"v_pk_fma_f32 {vr(a,2)}, {vr(8+4*T+2*h,2)}, {st}, {vr(a,2)} op_sel:[0,1,0] op_sel_hi:[1,1,1]")
                A(f"v_cvt_pk_bf16_f32 v{40+16*i+2*T+h}, v{a}, v{a+1}")
                A(f"v_pk_max_i16 v{40+16*i+2*T+h}, v{40+16*i+2*T+h}, 0")
    l15, le = A.label("c15"), A.label("ce")
    A(f"""
    s_mul_i32 s60, s64, 55296
    s_lshr_b32 s55, {sC}, 1
    s_mul_i32 s55, s55, 7168
    s_add_u32 s60, s60, s55
    s_add_u32 s60, s60, {H1F}
    s_add_u32 s61, s60, 55296
    s_add_u32 s62, s60, 4096
    s_add_u32 s63, s61, 4096
    s_and_b32 s55, {sC}, 1
    s_cmp_eq_u32 s55, 1
    s_cbranch_scc1 {l15}
    """)
    for i in range(2):
        P = 40 + 16 * i
        for k in range(3): A(f"buffer_store_dwordx4 {vr(P+4*k,4)}, v2, {SWS}, s{60+i} offen offset:{k*1024}{SC}")
        A(f"buffer_store_dwordx2 {vr(P+12,2)}, v2, {SWS}, s{60+i} offen offset:3072{SC}")
    A(f"s_branch {le}\n{l15}:")
    for i in range(2):
        P = 40 + 16 * i
        A(f"buffer_store_dwordx2 {vr(P,2)}, v2, {SWS}, s{60+i} offen offset:{3072+8}{SC}")
        A(f"buffer_store_dwordx4 {vr(P+2,4)}, v2, {SWS}, s{62+i} offen{SC}")
    A(f"s_cmp_eq_u32 {sC}, 15\ns_cbranch_scc1 {le}")
    for i in range(2):
        P = 40 + 16 * i
        A(f"buffer_store_dwordx4 {vr(P+6,4)}, v2, {SWS}, s{62+i} offen offset:1024{SC}")
        A(f"buffer_store_dwordx4 {vr(P+10,4)}, v2, {SWS}, s{62+i} offen offset:2048{SC}")
    A(f"{le}:")

def w2reg(step, T):
    k = step * 5 + T
    if k < 64: return ar(4 * k, 4)
    return vr(216 + 4 * (k - 64), 4)

def d_params(A):
    A(f"""
    s_lshr_b32 s62, {sC}, 1
    s_and_b32 s63, {sC}, 1
    s_mul_i32 s70, {sWAVE}, 14
    s_cmp_eq_u32 {sWAVE}, 3
    s_cselect_b32 s70, 41, s70
    s_lshl_b32 s70, s70, 10
    """)

def w2_loads(A, SC, steps):
    A(f"""
    s_mul_i32 s60, s62, {5*55296}
    s_add_u32 s60, s60, s70
    s_add_u32 s60, s60, {W2}
    """)
    for T in range(5):
        cur = None
        for st in steps:
            blk = st // 4
            if blk != cur:
                A(f"s_add_u32 s55, s60, {T*55296 + blk*4096}")
                cur = blk
            A(f"buffer_load_dwordx4 {w2reg(st,T)}, v2, {SWS}, s55 offen offset:{(st%4)*1024}{SC}")

def phase_D(A, cfg):
    SC = " sc1" if cfg.fused else ""
    ACC, HB = 8, 88
    A("; ---- phase D ----")
    lno = A.label("noopt")
    d_params(A)
    A(f"""
    s_lshl_b32 s64, {sR}, 3
    s_lshl_b32 s55, s63, 2
    s_add_u32 s64, s64, s55
    """)
    if not cfg.fused:
        lo, le = A.label("hodd"), A.label("he")
        A(f"""
        s_add_u32 s65, s64, {sWAVE}
        s_mul_i32 s60, s65, 20480
        s_lshr_b32 s55, s62, 1
        s_mul_i32 s55, s55, 5120
        s_add_u32 s60, s60, s55
        s_add_u32 s60, s60, {HF}
        s_add_u32 s61, s60, 4096
        s_and_b32 s55, s62, 1
        s_cmp_eq_u32 s55, 1
        s_cbranch_scc1 {lo}
        buffer_load_dwordx4 {vr(HK,4)}, v2, {SWS}, s60 offen
        buffer_load_dwordx4 {vr(HK+4,4)}, v2, {SWS}, s60 offen offset:1024
        buffer_load_dwordx2 {vr(HK+8,2)}, v2, {SWS}, s60 offen offset:2048
        s_branch {le}
        {lo}:
        buffer_load_dwordx2 {vr(HK,2)}, v2, {SWS}, s60 offen offset:2056
        buffer_load_dwordx4 {vr(HK+2,4)}, v2, {SWS}, s60 offen offset:3072
        buffer_load_dwordx4 {vr(HK+6,4)}, v2, {SWS}, s61 offen
        {le}:
        """)
        w2_loads(A, SC, list(range(13)))
        A(f"s_cmp_ge_u32 {sWAVE}, 2\ns_cbranch_scc1 {lno}x")
        w2_loads(A, SC, [13])
        A(f"{lno}x:\ns_waitcnt vmcnt(0)")
    for i in range(10):
        A(f"v_lshlrev_b32 v{ACC+2*i}, 16, v{HK+i}\nv_and_b32 v{ACC+2*i+1}, 0xffff0000, v{HK+i}")
    for i in range(20, 80): A(f"v_mov_b32 v{ACC+i}, 0")
    for i in range(4):
        A(f"""
        s_add_u32 s55, {sWAVE}, {i}
        s_and_b32 s55, s55, 3
        s_add_u32 s55, s55, s64
        s_mul_i32 s{66+i}, s55, 55296
        s_add_u32 s{66+i}, s{66+i}, s70
        s_add_u32 s{66+i}, s{66+i}, {H1F}
        """)
    if cfg.fused: wait_group(A, 4, False)
    def hload(st, slot):
        for i in range(4):
            A(f"s_add_u32 s55, s{66+i}, {(st//4)*4096}")
            A(f"buffer_load_dwordx4 {vr(HB+16*slot+4*i,4)}, v2, {SWS}, s55 offen offset:{(st%4)*1024}{SC}")
    def mm(st, slot, waits):
        for i in range(4):
            if waits is not None: A(f"s_waitcnt vmcnt({waits - i})")
            for T in range(5):
                acc = vr(ACC + 4 * (5 * i + T), 4)
                A(f"v_mfma_f32_16x16x32_bf16 {acc}, {w2reg(st,T)}, {vr(HB+16*slot+4*i,4)}, {acc}")
    lo2 = A.label("opt2")
    A(f"s_cmp_ge_u32 {sWAVE}, 2\ns_cbranch_scc1 {lno}")
    hload(13, 7)
    A(f"{lno}:")
    for st in range(7): hload(st, st)
    A(f"s_cmp_ge_u32 {sWAVE}, 2\ns_cbranch_scc1 {lo2}")
    mm(13, 7, 31)
    A(f"{lo2}:")
    hload(7, 7)
    issued = 8
    for st in range(13):
        mm(st, st % 8, 4 * (issued - st) - 1)
        if issued < 13:
            hload(issued, issued % 8); issued += 1
    RS = 64 * 336
    if cfg.fused: pass
    A(f"""
    v_and_b32 v88, 15, v1
    v_lshrrev_b32 v89, 4, v1
    v_mul_u32_u24 v88, 336, v88
    v_lshl_add_u32 v88, v89, 4, v88
    """)
    for i in range(4):
        A(f"""
        s_add_u32 s55, {sWAVE}, {i}
        s_and_b32 s55, s55, 3
        s_mul_i32 s55, s55, {16*336}
        s_mul_i32 s56, {sWAVE}, {RS}
        s_add_u32 s55, s55, s56
        v_add_u32 v89, s55, v88
        """)
        for T in range(5):
            A(f"ds_write_b128 v89, {vr(ACC+4*(5*i+T),4)} offset:{T*64}")
    for it in range(3):
        A(f"""
        v_add_u32 v90, {it*256}, v0
        v_mul_u32_u24 v91, 6554, v90
        v_lshrrev_b32 v91, 16, v91
        v_mul_u32_u24 v92, 10, v91
        v_sub_u32 v92, v90, v92
        v_mul_u32_u24 v{94+it}, 336, v91
        v_lshl_add_u32 v{94+it}, v92, 5, v{94+it}
        v_mul_u32_u24 v{98+it}, 1280, v91
        v_lshl_add_u32 v{98+it}, v92, 4, v{98+it}
        """)
    A(f"""
    s_mul_i32 s60, s64, 20480
    s_mul_i32 s55, s62, 160
    s_add_u32 s60, s60, s55
    s_waitcnt lgkmcnt(0)
    s_barrier
    """)
    lend = A.label("dend")
    for it in range(3):
        if it == 2:
            A(f"s_cmp_ge_u32 {sWAVE}, 2\ns_cbranch_scc1 {lend}")
        B = 104 + 32 * it
        for w in range(4):
            off = w * RS
            if off >= 65536 - 32:
                A(f"v_add_u32 v93, {off}, v{94+it}")
                A(f"ds_read_b128 {vr(B+8*w,4)}, v93\nds_read_b128 {vr(B+8*w+4,4)}, v93 offset:16")
            else:
                A(f"ds_read_b128 {vr(B+8*w,4)}, v{94+it} offset:{off}\nds_read_b128 {vr(B+8*w+4,4)}, v{94+it} offset:{off+16}")
        for w in range(1, 4):
            A(f"s_waitcnt lgkmcnt({6-2*w})")
            for j in range(0, 8, 2):
                A(f"v_pk_add_f32 {vr(B+j,2)}, {vr(B+j,2)}, {vr(B+8*w+j,2)}")
        for j in range(4): A(f"v_cvt_pk_bf16_f32 v{B+j}, v{B+2*j}, v{B+2*j+1}")
        A(f"buffer_store_dwordx4 {vr(B,4)}, v{98+it}, {SOUT}, s60 offen")
    A(f"{lend}:")

def kernel_wrap(name, body_fn, cfg):
    A = Asm()
    A.uid = hash(name) % 1000 * 1000
    ex = f"L_exit_{name}"
    A(f".text\n.globl {name}\n.p2align 8\n.type {name},@function\n{name}:")
    prologue(A, ex)
    tail = body_fn(A)
    A(f"{ex}:\ns_endpgm")
    if tail: tail(A)
    A(f"""
    .section .rodata,"a"
    .p2align 6
    .amdhsa_kernel {name}
    .amdhsa_next_free_vgpr 512
    .amdhsa_next_free_sgpr 96
    .amdhsa_accum_offset 256
    .amdhsa_group_segment_fixed_size 0
    .amdhsa_kernarg_size 80
    .amdhsa_user_sgpr_count 2
    .amdhsa_user_sgpr_kernarg_segment_ptr 1
    .amdhsa_system_sgpr_workgroup_id_x 1
    .end_amdhsa_kernel
    """)
    return A.render()

def build(cfg):
    hdr = open("cdna_kernels/" + NAME + ".s.ref").read().split("; Override")[0]
    ks = []
    def kA(A):
        nonce_setup(A); wphi_frags(A); A("s_barrier"); phase_A(A, cfg)
        return softmax_routine
    parts = [("hp_kernel", lambda A: phase_P(A, cfg)), ("ha_kernel", kA), ("hb_kernel", lambda A: phase_B(A, cfg)),
             ("hc_kernel", lambda A: phase_C(A, cfg)), ("hd_kernel", lambda A: phase_D(A, cfg))]
    out = hdr
    for n, _ in parts:
        out += f"; @launch kernel={n} grid=(256,1,1) block=(256,1,1) lds=163840\n"
    out += '.amdgcn_target "amdgcn-amd-amdhsa--gfx950"\n'
    for i, (n, f) in enumerate(parts):
        out += kernel_wrap(n, f, cfg)
    return out

if __name__ == "__main__":
    cfg = Cfg()
    cfg.dbg = "dbg" in sys.argv
    dst = sys.argv[1] if len(sys.argv) > 1 else "cdna_kernels/" + NAME + ".s"
    open(dst, "w").write(build(cfg))
    print("wrote", dst)
```

```python
import re

REG_RE = re.compile(r'\b([vas])(\d+)\b|\b([vas])\[(\d+):(\d+)\]|\b(vcc|exec|m0|scc)\b')

def regs_of(tok):
    out = set()
    for m in REG_RE.finditer(tok):
        if m.group(1):
            out.add((m.group(1), int(m.group(2))))
        elif m.group(3):
            for i in range(int(m.group(4)), int(m.group(5)) + 1):
                out.add((m.group(3), i))
        else:
            out.add((m.group(6), 0))
    return out

TRANS = ("v_exp_f32", "v_log_f32", "v_rcp_f32", "v_rsq_f32", "v_sqrt_f32", "v_sin_f32", "v_cos_f32")

class Ins:
    __slots__ = ("text", "op", "rd", "wr", "kind", "passes", "srcc", "srcab", "dst", "wide_store", "data", "lds_dma", "dpp")
    def __init__(self, text):
        self.text = text
        t = text.split(";")[0].strip()
        parts = t.split(None, 1)
        self.op = op = parts[0]
        rest = parts[1] if len(parts) > 1 else ""
        ops = [o.strip() for o in rest.split(",")] if rest else []
        self.rd = set(); self.wr = set(); self.kind = "other"; self.passes = 0
        self.srcc = set(); self.srcab = set(); self.dst = set(); self.wide_store = False; self.data = set()
        self.lds_dma = False; self.dpp = ("row_" in rest or "quad_perm" in rest or "_dpp" in op)
        R = regs_of
        if op.startswith("v_mfma"):
            self.kind = "mfma"
            self.passes = 8 if "32x32x16" in op else 4
            self.dst = R(ops[0]); self.wr = set(self.dst)
            self.srcab = R(ops[1]) | R(ops[2]); self.srcc = R(ops[3])
            self.rd = self.srcab | self.srcc
        elif op.startswith("v_"):
            self.kind = "valu"
            if op.startswith("v_cmp"):
                self.wr = R(ops[0]); self.rd = set().union(*[R(o) for o in ops[1:]])
            elif op.startswith("v_permlane") and "swap" in op:
                self.wr = R(ops[0]) | R(ops[1]); self.rd = set(self.wr)
            elif op.startswith(("v_add_co", "v_sub_co", "v_addc_co", "v_subb_co")):
                self.wr = R(ops[0]) | R(ops[1]); self.rd = set().union(*[R(o) for o in ops[2:]])
            else:
                self.wr = R(ops[0]); self.rd = set().union(*[R(o) for o in ops[1:]]) if len(ops) > 1 else set()
                if op.startswith(("v_fmac", "v_dot2c", "v_writelane")) or self.dpp:
                    self.rd |= self.wr
                if op.startswith("v_cndmask") and len(ops) == 3:
                    self.rd.add(("vcc", 0))
        elif op.startswith(("buffer_", "global_")):
            self.kind = "vmem"
            if op in ("buffer_wbl2", "buffer_inv"):
                pass
            elif "store" in op or "atomic" in op:
                if op.startswith("buffer_"):
                    self.data = R(ops[0])
                else:
                    self.data = R(ops[1])
                self.rd = set().union(*[R(o) for o in ops])
                self.wide_store = ("x3" in op or "x4" in op)
            elif re.search(r'\blds\b', rest):
                self.lds_dma = True
                self.rd = set().union(*[R(o) for o in ops]) | {("m0", 0)}
            else:
                self.wr = R(ops[0]); self.rd = set().union(*[R(o) for o in ops[1:]])
        elif op.startswith("ds_"):
            self.kind = "ds"
            if op.startswith(("ds_write", "ds_add")):
                self.rd = set().union(*[R(o) for o in ops])
            else:
                self.wr = R(ops[0]); self.rd = set().union(*[R(o) for o in ops[1:]])
                if "d16" in op:
                    self.rd |= self.wr
        elif op.startswith("s_"):
            self.kind = "salu"
            if op.startswith(("s_cmp", "s_cbranch", "s_branch", "s_waitcnt", "s_barrier", "s_nop", "s_sleep", "s_endpgm", "s_setprio", "s_setpc")):
                self.rd = set().union(*[R(o) for o in ops]) if ops else set()
            else:
                self.wr = R(ops[0]) if ops else set()
                self.rd = set().union(*[R(o) for o in ops[1:]]) if len(ops) > 1 else set()
    def states(self):
        if self.op == "s_nop":
            return int(self.text.split(";")[0].split()[1], 0) + 1
        return 1

def vec(s):
    return {x for x in s if x[0] in "va"}
def sca(s):
    return {x for x in s if x[0] == "s" or x[0] == "vcc"}

def need(p, c):
    n = 0
    if p.kind == "valu":
        w = vec(p.wr)
        if c.kind == "mfma" and (w & c.rd): n = max(n, 2)
        if c.kind == "valu":
            if c.op.startswith("v_permlane") and (w & c.rd): n = max(n, 2)
            if c.dpp and (w & c.rd): n = max(n, 2)
            if c.op.startswith(("v_readfirstlane", "v_readlane")) and (w & c.rd): n = max(n, 1)
        if p.op in TRANS and (w & c.rd) and c.op not in TRANS: n = max(n, 1)
        if p.op in TRANS and (w & c.rd): n = max(n, 1)
        if p.op.startswith("v_dot2"):
            if (w & (c.rd | c.wr)):
                if c.op == p.op and c.kind == "valu":
                    toks = [o.strip() for o in c.text.split(";")[0].split(None, 1)[1].split(",")]
                    ab = regs_of(toks[1]) | regs_of(toks[2])
                    if w & ab: n = max(n, 3)
                else:
                    n = max(n, 3)
        sw = sca(p.wr)
        if sw:
            if c.kind in ("valu", "mfma") and (sw & c.rd): n = max(n, 4 if c.op.startswith(("v_readlane", "v_writelane")) else 2)
            if c.kind == "vmem" and (sw & c.rd): n = max(n, 5)
            if c.kind == "salu" and (sw & c.rd): n = max(n, 1)
            if c.op.startswith("s_cbranch_vcc") and ("vcc", 0) in sw: n = max(n, 1)
    if p.kind == "mfma":
        far = {4: 8, 8: 12}[p.passes]
        if c.kind == "mfma":
            if p.dst & c.srcab: n = max(n, far)
            if p.dst & c.srcc:
                if not (c.srcc == p.dst and c.passes == p.passes): n = max(n, {4: 6, 8: 10}[p.passes])
            if (p.dst & c.dst) and not (c.srcc == p.dst and c.passes == p.passes): n = max(n, {4: 6, 8: 10}[p.passes])
        elif c.kind in ("valu", "vmem", "ds"):
            if p.dst & (c.rd | c.wr): n = max(n, far)
            if c.kind == "valu" and (p.srcc & c.wr): n = max(n, {4: 3, 8: 7}[p.passes])
    if p.kind == "salu" and ("m0", 0) in p.wr and (c.lds_dma): n = max(n, 1)
    if p.kind == "vmem" and p.wide_store and (p.data & c.wr): n = max(n, 2)
    return n

class Asm:
    def __init__(self):
        self.items = []
        self.uid = 0
        self.vm = []
        self.tag = None
        self.cond = 0
        self.bg = []
    def __call__(self, text, tag=None):
        for line in text.split("\n"):
            line = line.strip()
            if not line: continue
            if line.startswith(";") or line.startswith(".") or line.endswith(":"):
                self.items.append(line)
            else:
                ins = Ins(line)
                self.items.append(ins)
                if ins.kind == "vmem" and ins.op not in ("buffer_wbl2", "buffer_inv"):
                    self.vm.append((tag or self.tag, self.cond == 0))
                if ins.op == "s_waitcnt" and "vmcnt(0)" in line and self.cond == 0:
                    self.vm = []
    def vm_after(self, tag):
        idx = [i for i, (t, c) in enumerate(self.vm) if t == tag]
        if not idx: return None
        return sum(1 for (t, c) in self.vm[idx[-1] + 1:] if c)
    def wait(self, tag, extra=""):
        n = self.vm_after(tag)
        if n is None or n > 63:
            if extra: self(f"s_waitcnt {extra}")
            return
        self(f"s_waitcnt vmcnt({n}) {extra}".strip())
    def sprinkle(self, n=1):
        for _ in range(n):
            if self.bg:
                text, tag = self.bg.pop(0)
                self(text, tag)
    def label(self, base):
        self.uid += 1
        return f"L_{base}_{self.uid}"
    def render(self):
        out = []
        hist = []
        nins = 0
        for it in self.items:
            if isinstance(it, str):
                out.append(it if (it.endswith(":") or it.startswith(".")) else "  " + it)
                continue
            dist = 0; req = 0
            for p in reversed(hist):
                r = need(p, it) - dist
                if r > req: req = r
                dist += p.states()
                if dist >= 20: break
            while req > 0:
                k = min(req, 16)
                nop = Ins(f"s_nop {k-1}")
                hist.append(nop); out.append(f"  s_nop {k-1}"); req -= k; nins += 1
            hist.append(it); out.append("  " + it.text); nins += 1
            if len(hist) > 40: hist = hist[-40:]
        return "\n".join(out) + "\n"
```

```python
import sys
sys.path.insert(0, "dev")
from asmlib import Asm

NAME = "sequential_preLN__linear_kernel_hedgehog__dense_activation_relu__prompt"

WQ  = 0
WO  = WQ + 2621440
W2  = WO + 819200
KVP = W2 + 2211840
OF  = KVP + 256 * 6784
HF  = OF + 2621440
H1F = HF + 2621440
W1  = H1F + 7077888
STT = W1 + 108 * 20480
CSQ = STT + 131072
CS1 = CSQ + 131072
CSJ = CS1 + 20 * 6912
FLG = (CSJ + 54 * 2560 + 4095) // 4096 * 4096
STAMP = 64 << 20
DBGA = 128 << 20
WS_BYTES = 268435456

SWS, SX, SOUT, SSRC, SW1 = "s[28:31]", "s[32:35]", "s[36:39]", "s[40:43]", "s[44:47]"
sWAVE, sR, sC, sNONCE, sRA, sCA = "s48", "s49", "s50", "s51", "s82", "s83"
SC = " sc1"
SPIN = 0x40000

class Cfg:
    stamps = False
    mapA = "8x4"
    mapB = "4x8"

def vr(b, n): return f"v[{b}:{b+n-1}]"
def ar(b, n): return f"a[{b}:{b+n-1}]"

def emit_map(A, kind, r, c):
    if kind == "2x16":
        A(f"s_lshl_b32 {r}, s52, 1\ns_and_b32 s54, s53, 1\ns_add_u32 {r}, {r}, s54\ns_lshr_b32 {c}, s53, 1")
    elif kind == "4x8":
        A(f"s_lshr_b32 {r}, s52, 1\ns_lshl_b32 {r}, {r}, 2\ns_and_b32 s54, s53, 3\ns_add_u32 {r}, {r}, s54")
        A(f"s_and_b32 {c}, s52, 1\ns_lshl_b32 {c}, {c}, 3\ns_lshr_b32 s54, s53, 2\ns_add_u32 {c}, {c}, s54")
    elif kind == "8x4":
        A(f"s_lshr_b32 {r}, s52, 2\ns_lshl_b32 {r}, {r}, 3\ns_and_b32 s54, s53, 7\ns_add_u32 {r}, {r}, s54")
        A(f"s_and_b32 {c}, s52, 3\ns_lshl_b32 {c}, {c}, 2\ns_lshr_b32 s54, s53, 3\ns_add_u32 {c}, {c}, s54")
    else:
        raise ValueError(kind)

def prologue(A, cfg, exit_label):
    A(f"""
    s_cmp_ge_u32 s2, 256
    s_cbranch_scc1 {exit_label}
    s_load_dwordx16 s[8:23], s[0:1], 0
    s_load_dwordx4 s[24:27], s[0:1], 64
    v_and_b32 v1, 63, v0
    v_lshrrev_b32 v2, 6, v0
    s_and_b32 s52, s2, 7
    s_lshr_b32 s53, s2, 3
    v_readfirstlane_b32 {sWAVE}, v2
    """)
    emit_map(A, cfg.mapB, sR, sC)
    emit_map(A, cfg.mapA, sRA, sCA)
    A(f"""
    v_lshlrev_b32 v2, 4, v1
    s_mov_b32 s30, {WS_BYTES}
    s_mov_b32 s31, 0x20000
    s_mov_b32 s34, 2621440
    s_mov_b32 s35, 0x20000
    s_mov_b32 s38, 2621440
    s_mov_b32 s39, 0x20000
    s_mov_b32 s43, 0x20000
    s_mov_b32 s46, {108*20480}
    s_mov_b32 s47, 0x20000
    s_mov_b32 s84, 0x3fb8aa3b
    s_mov_b32 s85, 0x3fb8aa3b
    """)

def prologue2(A):
    A(f"""
    s_waitcnt lgkmcnt(0)
    s_mov_b32 s28, s26
    s_mov_b32 s29, s27
    s_mov_b32 s32, s8
    s_mov_b32 s33, s9
    s_mov_b32 s36, s22
    s_mov_b32 s37, s23
    s_add_u32 s44, s26, {W1}
    s_addc_u32 s45, s27, 0
    """)

STV = 244
def stamp(A, cfg, k):
    if cfg.stamps:
        A(f"s_memrealtime s[94:95]\ns_memtime s[96:97]\ns_waitcnt lgkmcnt(0)\nv_writelane_b32 v{STV}, s94, {k}\nv_writelane_b32 v{STV+1}, s96, {k}")

def stamp_flush(A, cfg):
    if cfg.stamps:
        A(f"""
        s_waitcnt vmcnt(0)
        s_memrealtime s[94:95]
        s_waitcnt lgkmcnt(0)
        v_writelane_b32 v{STV}, s94, 63
        s_lshl_b32 s90, s2, 2
        s_add_u32 s90, s90, {sWAVE}
        s_lshl_b32 s90, s90, 8
        s_add_u32 s90, s90, {STAMP}
        v_lshlrev_b32 v5, 2, v1
        buffer_store_dword v{STV}, v5, {SWS}, s90 offen
        s_add_u32 s90, s90, {8<<20}
        buffer_store_dword v{STV+1}, v5, {SWS}, s90 offen
        """)

def nonce_publish(A):
    l = A.label("nn")
    A.cond += 1
    A(f"""
    s_or_b32 s55, s2, {sWAVE}
    s_cmp_lg_u32 s55, 0
    s_cbranch_scc1 {l}
    s_memrealtime s[56:57]
    v_mov_b32 v8, 0
    s_waitcnt lgkmcnt(0)
    s_or_b32 s56, s56, 1
    v_mov_b32 v9, s56
    s_mov_b64 exec, 1
    global_store_dword v8, v9, s[24:25] sc1
    s_mov_b64 exec, -1
    {l}:
    """)
    A.cond -= 1

def nonce_fetch(A):
    l2, l3 = A.label("np"), A.label("nd")
    A(f"""
    v_mov_b32 v6, 0
    s_mov_b32 s57, 0
    {l2}:
    global_load_dword v7, v6, s[24:25] sc1
    s_add_u32 s57, s57, 1
    s_waitcnt vmcnt(0)
    v_readfirstlane_b32 {sNONCE}, v7
    s_cmp_ge_u32 s57, {SPIN}
    s_cbranch_scc1 {l3}
    s_cmp_eq_u32 {sNONCE}, 0
    s_cbranch_scc1 {l2}
    {l3}:
    """)

def flag_store(A):
    A(f"""
    v_mov_b32 v6, s59
    v_mov_b32 v7, {sNONCE}
    s_mov_b64 exec, 1
    buffer_store_dword v7, v6, {SWS}, s58 offen sc1
    s_mov_b64 exec, -1
    """)

def signal_global(A, hop, fetch_nonce=False):
    l = A.label("sig")
    A.cond += 1
    A(f"s_cmp_lg_u32 {sWAVE}, 0\ns_cbranch_scc1 {l}")
    if fetch_nonce: nonce_fetch(A)
    A(f"""
    s_lshr_b32 s58, s2, 2
    s_lshl_b32 s58, s58, 7
    s_add_u32 s58, s58, {FLG + hop*8192}
    s_and_b32 s59, s2, 3
    s_lshl_b32 s59, s59, 2
    """)
    flag_store(A)
    A(f"{l}:")
    A.cond -= 1

def poll_global(A, hop, R):
    lp, ld = A.label("poll"), A.label("pd")
    A(f"""
    v_lshlrev_b32 v6, 7, v1
    s_mov_b32 s58, {FLG + hop*8192}
    s_mov_b32 s57, 0
    {lp}:
    buffer_load_dwordx4 {vr(R,4)}, v6, {SWS}, s58 offen sc1
    s_add_u32 s57, s57, 1
    s_waitcnt vmcnt(0)
    v_xor_b32 v{R}, {sNONCE}, v{R}
    v_xor_b32 v{R+1}, {sNONCE}, v{R+1}
    v_xor_b32 v{R+2}, {sNONCE}, v{R+2}
    v_xor_b32 v{R+3}, {sNONCE}, v{R+3}
    v_or3_b32 v{R}, v{R}, v{R+1}, v{R+2}
    v_or_b32 v{R}, v{R}, v{R+3}
    v_cmp_ne_u32 vcc, 0, v{R}
    s_cmp_ge_u32 s57, {SPIN}
    s_cbranch_scc1 {ld}
    s_cbranch_vccnz {lp}
    {ld}:
    """)

def wait_global(A, hop, R):
    l = A.label("wt")
    A.cond += 1
    A(f"s_cmp_lg_u32 {sWAVE}, 0\ns_cbranch_scc1 {l}")
    poll_global(A, hop, R)
    A(f"{l}:")
    A.cond -= 1
    A("s_barrier")

def signal_group(A, hop, g, m, tag):
    l = A.label("sig")
    A.wait(tag)
    A("s_barrier")
    A.cond += 1
    A(f"""
    s_cmp_lg_u32 {sWAVE}, 0
    s_cbranch_scc1 {l}
    s_lshl_b32 s58, {g}, 7
    s_add_u32 s58, s58, {FLG + hop*8192}
    s_lshl_b32 s59, {m}, 2
    """)
    flag_store(A)
    A(f"{l}:")
    A.cond -= 1

def wait_group(A, hop, g):
    l, lp, ld = A.label("wt"), A.label("poll"), A.label("pd")
    A.cond += 1
    A(f"""
    s_cmp_lg_u32 {sWAVE}, 0
    s_cbranch_scc1 {l}
    s_lshl_b32 s58, {g}, 7
    s_add_u32 s58, s58, {FLG + hop*8192}
    v_lshlrev_b32 v6, 2, v1
    s_mov_b64 exec, 0xffff
    s_mov_b32 s57, 0
    {lp}:
    buffer_load_dword v7, v6, {SWS}, s58 offen sc1
    s_add_u32 s57, s57, 1
    s_waitcnt vmcnt(0)
    v_cmp_ne_u32 vcc, {sNONCE}, v7
    s_cmp_ge_u32 s57, {SPIN}
    s_cbranch_scc1 {ld}
    s_cbranch_vccnz {lp}
    {ld}:
    s_mov_b64 exec, -1
    {l}:
    """)
    A.cond -= 1
    A("s_barrier")


def side_params(A, sj, d):
    A(f"""
    s_cmp_lt_u32 {sj}, 540
    s_cselect_b32 s40, s18, s20
    s_cselect_b32 s41, s19, s21
    s_mov_b32 s42, 2211840
    s_mov_b32 s60, 1280
    s_cselect_b32 s60, 3456, s60
    s_mov_b32 s{d+1}, 55296
    s_cselect_b32 s{d+1}, 20480, s{d+1}
    s_cselect_b32 s55, 0, 540
    s_mov_b32 s56, 1214
    s_cselect_b32 s56, 3277, s56
    s_cselect_b32 s57, 20, 54
    s_mov_b32 s{d}, {W2}
    s_cselect_b32 s{d}, {W1}, s{d}
    s_mov_b32 s{d+2}, {CSJ}
    s_cselect_b32 s{d+2}, {CS1}, s{d+2}
    s_sub_u32 s55, {sj}, s55
    s_mul_i32 s58, s55, s56
    s_lshr_b32 s58, s58, 16
    s_mul_i32 s59, s58, s57
    s_sub_u32 s59, s55, s59
    s_lshl_b32 s55, s60, 5
    s_mul_i32 s61, s59, s55
    s_lshl_b32 s55, s58, 7
    s_add_u32 s61, s61, s55
    s_lshl_b32 s55, s{d+1}, 2
    s_mul_i32 s55, s55, s58
    s_add_u32 s{d}, s{d}, s55
    s_lshl_b32 s55, s59, 10
    s_add_u32 s{d}, s{d}, s55
    s_lshl_b32 s55, s60, 1
    s_mul_i32 s55, s55, s59
    s_add_u32 s{d+2}, s{d+2}, s55
    s_lshl_b32 s55, s58, 8
    s_add_u32 s{d+2}, s{d+2}, s55
    """)

def dma_rows(A, n, lds_off):
    A(f"""
    s_add_u32 m0, s64, {lds_off}
    v_mad_u32_u24 v11, v3, s60, v4
    s_lshl_b32 s55, s60, 3
    """)
    for i in range(n):
        A(f"buffer_load_dwordx4 v11, {SSRC}, s61 offen lds")
        if i + 1 < n:
            A("s_add_u32 m0, m0, 1024\ns_add_u32 s61, s61, s55")

def side_process(A, lds_off, d, R):
    A(f"v_mad_u32_u24 v{R+16}, v12, s{d+1}, v13\nv_mov_b32 v{R+17}, 0\nv_mov_b32 v{R+18}, 0")
    for g in range(4):
        A(f"ds_read_b64_tr_b16 v[{R+4*g}:{R+1+4*g}], v5 offset:{lds_off + 4*g*128}")
        A(f"ds_read_b64_tr_b16 v[{R+2+4*g}:{R+3+4*g}], v5 offset:{lds_off + (16+4*g)*128}")
    for g in range(4):
        A(f"s_waitcnt lgkmcnt({6-2*g})")
        A(f"buffer_store_dwordx4 v[{R+4*g}:{R+3+4*g}], v{R+16}, {SWS}, s{d} offen offset:{g*256}{SC}")
        for j in range(4): A(f"v_dot2c_f32_bf16 v{R+17+j%2}, s79, v{R+4*g+j}")
    A(f"v_add_f32 v{R+17}, v{R+17}, v{R+18}")
    A(f"buffer_store_dword v{R+17}, v14, {SWS}, s{d+2} offen{SC}")

def allreduce_16_32(A, pairs):
    for sw in ("v_permlane16_swap_b32", "v_permlane32_swap_b32"):
        for v, t in pairs: A(f"v_mov_b32 v{t}, v{v}")
        for v, t in pairs: A(f"{sw} v{v}, v{t}")
        for v, t in pairs: A(f"v_add_f32 v{v}, v{v}, v{t}")

def stats_finish(A, vs, vq, vt):
    A(f"""
    v_mul_f32 v{vs}, 0x3acccccd, v{vs}
    v_mul_f32 v{vq}, 0x3acccccd, v{vq}
    v_fma_f32 v{vt}, -v{vs}, v{vs}, v{vq}
    v_max_f32 v{vt}, 0, v{vt}
    v_add_f32 v{vt}, 0x3727c5ac, v{vt}
    v_rsq_f32 v{vt}, v{vt}
    v_mul_f32 v{vq}, -v{vs}, v{vt}
    v_mov_b32 v{vs}, v{vt}
    """)


WM, WLf = 8, 20
ACK, ACV, ACL, ACQ = 32, 48, 64, 80
CSF = 96
U = 112
PP, PL = 124, 140
EP, EN = 156, 176
PH = 196
VV = 156
QL = 216
TM = 218
RSTD, LSC, MF = 230, 232, 236
aPKW, aTRA0, aTRA1, aTRB0, aTRB1, aKVS, aKVL, aKVF, aOST, aZ = range(246, 256)
aKVF2, aHW, aHR, aWM, aWL = 234, 235, 240, 241, 242
PKV_LDS = 88 * 1024
KVF_LDS = 150 * 1024
WPHI_LDS = 152 * 1024
XS_LDS = 40 * 1024
HOLE_LDS = 158 * 1024
XR, WO25, HK = 230, 240, 246
WA0, WA1 = 160, 208

def x_reads(A, chunks, first):
    cur = None
    n = 0
    todo = []
    for j, slot in chunks:
        off = XS_LDS + slot * 16384
        win = off >> 16
        for sp in range(4):
            todo.append((4 * j + sp, sp, win, off & 0xffff))
    for k, (s, sp, win, o) in enumerate(todo):
        if win != cur:
            for q in range(4): A(f"v_add_u32 v{116+q}, {win << 16}, v{112+q}")
            cur = win
        A(f"ds_read_b128 {vr(124+4*k,4)}, v{116+sp} offset:{o}")
        A(f"ds_read_b128 {ar(4*s,4)}, v{116+sp} offset:{o}")
        if k % 4 == 3 and k >= 7:
            A("s_waitcnt lgkmcnt(8)")
            for kk in range(k - 7, k - 3): x_stats(A, 124 + 4 * kk)
    A("s_waitcnt lgkmcnt(0)")
    for kk in range(len(todo) - 4, len(todo)): x_stats(A, 124 + 4 * kk)

def x_stats(A, R):
    for j in range(4):
        A(f"v_dot2c_f32_bf16 v{120+2*(j%2)}, s79, v{R+j}")
        A(f"v_dot2c_f32_bf16 v{121+2*(j%2)}, v{R+j}, v{R+j}")

def split_hi_lo(A, src, hi, lo, t):
    A(f"""
    v_cvt_pk_bf16_f32 v{hi}, v{src}, 0
    v_lshlrev_b32 v{t}, 16, v{hi}
    v_sub_f32 v{t}, v{src}, v{t}
    v_cvt_pk_bf16_f32 v{lo}, v{t}, 0
    """)

def phase_P(A, cfg):
    lX, lJ, lNOX, lWO, lR2, lSD, lX2, lPE, lL4, lPL = (A.label(x) for x in ("xrole", "join", "noextra", "wo", "r2", "sided", "x2", "pe", "l4", "pl"))
    A(f"""
    ; ---- phase P ----
    v_lshrrev_b32 v3, 3, v1
    v_and_b32 v4, 7, v1
    v_lshlrev_b32 v14, 2, v1
    s_mov_b32 s79, 0x3f803f80
    s_mul_i32 s64, {sWAVE}, 18432
    """)
    A.cond += 1
    A(f"s_cmp_ge_u32 {sWAVE}, 2\ns_cbranch_scc1 {lX}")
    A(f"""
    v_min_u32 v8, 4, v4
    v_lshlrev_b32 v8, 4, v8
    v_min_u32 v9, 5, v4
    v_lshrrev_b32 v10, 1, v9
    v_mul_u32_u24 v10, 1280, v10
    v_and_b32 v9, 1, v9
    v_lshl_add_u32 v10, v9, 5, v10
    v_add_u32 v10, 32, v10
    v_add_u32 v9, 2560, v8
    s_cmp_eq_u32 {sWAVE}, 0
    s_cselect_b64 vcc, -1, 0
    s_cselect_b32 s55, 1280, 0
    v_cndmask_b32 v9, v10, v9, vcc
    v_add_u32 v8, s55, v8
    v_mul_u32_u24 v10, 3840, v3
    v_add_u32 v8, v8, v10
    v_add_u32 v9, v9, v10
    s_mul_i32 s61, {sRA}, {40*3840}
    s_mul_i32 s55, {sCA}, 80
    s_add_u32 s61, s61, s55
    s_mov_b32 m0, s64
    s_mov_b32 s42, 2457600
    """)
    prologue2(A)
    A("s_mov_b32 s40, s10\ns_mov_b32 s41, s11")
    for i in range(5):
        A(f"buffer_load_dwordx4 v8, {SSRC}, s61 offen lds\ns_add_u32 m0, m0, 5120")
        A(f"s_nop 0\nbuffer_load_dwordx4 v9, {SSRC}, s61 offen lds\ns_sub_u32 m0, m0, 4096\ns_add_u32 s61, s61, {8*3840}")
    A("s_barrier")
    stamp(A, cfg, 1)
    nonce_publish(A)
    A("s_call_b64 s[80:81], L_addr")
    A(f"""
    v_bfe_u32 v15, v1, 2, 2
    v_lshrrev_b32 v16, 5, v1
    v_lshl_add_u32 v15, v16, 3, v15
    v_lshlrev_b32 v15, 7, v15
    v_add_u32 v15, s64, v15
    v_bfe_u32 v17, v1, 4, 1
    v_bfe_u32 v18, v1, 1, 1
    v_lshl_add_u32 v17, v17, 1, v18
    v_and_b32 v18, 1, v1
    v_mul_u32_u24 v19, 40, v18
    v_lshl_add_u32 v19, v17, 3, v19
    v_min_u32 v17, 2, v17
    v_mul_u32_u24 v20, 24, v18
    v_lshl_add_u32 v20, v17, 5, v20
    v_cndmask_b32 v20, v20, v19, vcc
    v_add_u32 v19, v15, v19
    v_add_u32 v20, v15, v20
    v_and_b32 v17, 31, v1
    v_lshlrev_b32 v21, 2, v17
    v_lshlrev_b32 v17, 4, v17
    s_cmp_eq_u32 {sWAVE}, 0
    s_cselect_b32 s66, 0, 122880
    s_mov_b32 s67, 1024
    s_cselect_b32 s67, 3072, s67
    s_mov_b32 s68, 2048
    s_cselect_b32 s68, 1024, s68
    s_mov_b32 s69, 3072
    s_cselect_b32 s70, 0, 384
    s_mov_b32 s71, 256
    s_cselect_b32 s71, 128, s71
    s_mul_i32 s55, {sCA}, 163840
    s_add_u32 s66, s66, s55
    s_add_u32 s68, s68, s55
    s_lshl_b32 s55, {sCA}, 4
    s_add_u32 s55, s55, {sRA}
    s_lshl_b32 s55, s55, 9
    s_add_u32 s55, s55, {CSQ}
    s_add_u32 s70, s70, s55
    s_add_u32 s71, s71, s55
    s_mul_i32 s55, {sRA}, 5
    v_add_u32 v16, s55, v16
    """)
    for i in range(3):
        A(f"""
        v_add_u32 v18, {2*i}, v16
        v_and_b32 v22, 1, v18
        v_lshl_add_u32 v22, v22, 9, v17
        v_lshrrev_b32 v18, 1, v18
        v_mad_u32_u24 v{24+i}, v18, s67, v22
        v_mad_u32_u24 v{28+i}, v18, s69, v22
        """)
    A(f"""
    v_bfe_u32 v10, v1, 4, 1
    v_lshlrev_b32 v10, 2, v10
    v_xor_b32 v4, v4, v10
    v_lshlrev_b32 v4, 4, v4
    v_lshrrev_b32 v12, 4, v1
    v_and_b32 v13, 15, v1
    v_and_b32 v10, 3, v1
    v_lshlrev_b32 v10, 3, v10
    v_lshl_add_u32 v10, v12, 5, v10
    v_bfe_u32 v11, v1, 3, 1
    v_lshlrev_b32 v11, 6, v11
    v_xor_b32 v10, v10, v11
    v_bfe_u32 v11, v1, 2, 2
    v_lshl_add_u32 v5, v11, 7, v10
    v_add_u32 v5, s64, v5
    v_lshlrev_b32 v13, 4, v13
    v_mov_b32 v56, 0
    v_mov_b32 v57, 0
    """)
    nonce_fetch(A)
    stamp(A, cfg, 10)
    for i in range(3):
        for t, ad in ((0, 19), (1, 20)):
            R = 32 + 12 * t + 4 * i
            A(f"ds_read_b64_tr_b16 v[{R}:{R+1}], v{ad} offset:{t*5120 + 16*i*128}")
            A(f"ds_read_b64_tr_b16 v[{R+2}:{R+3}], v{ad} offset:{t*5120 + (16*i+4)*128}")
    for i in range(3):
        if i == 2: A("s_mov_b64 exec, 0xffffffff")
        for t in range(2):
            R = 32 + 12 * t + 4 * i
            A(f"s_waitcnt lgkmcnt({10 - 4*i - 2*t})")
            A(f"buffer_store_dwordx4 v[{R}:{R+3}], v{(24, 28)[t]+i}, {SWS}, s{(66, 68)[t]} offen{SC}")
    for i in (2, 0, 1):
        for j in range(4):
            for t in range(2): A(f"v_dot2c_f32_bf16 v{56+t}, s79, v{32+12*t+4*i+j}")
        if i == 2: A("s_mov_b64 exec, -1")
    A("""
    v_mov_b32 v58, v56
    v_mov_b32 v59, v57
    v_permlane32_swap_b32 v56, v58
    v_permlane32_swap_b32 v57, v59
    v_add_f32 v56, v56, v58
    v_add_f32 v57, v57, v59
    s_mov_b64 exec, 0xffffffff
    """)
    A(f"buffer_store_dword v56, v21, {SWS}, s70 offen{SC}\nbuffer_store_dword v57, v21, {SWS}, s71 offen{SC}\ns_mov_b64 exec, -1")
    stamp(A, cfg, 2)
    A(f"s_lshl_b32 s65, s2, 1\ns_add_u32 s65, s65, {sWAVE}\ns_lshl_b32 s62, s65, 1")
    side_params(A, "s62", 66)
    dma_rows(A, 4, 0)
    A("s_add_u32 s62, s62, 1")
    side_params(A, "s62", 69)
    dma_rows(A, 4, 4096)
    A(f"s_branch {lJ}")
    A(f"""
    {lX}:
    v_lshrrev_b32 v10, 4, v1
    v_xor_b32 v4, v4, v10
    v_mul_u32_u24 v8, 1280, v3
    v_lshl_add_u32 v8, v4, 4, v8
    v_xor_b32 v9, 64, v8
    s_sub_u32 s55, {sWAVE}, 2
    s_lshl_b32 s66, s55, 13
    s_add_u32 s66, s66, {XS_LDS}
    s_lshl_b32 s56, {sRA}, 1
    s_add_u32 s55, s55, s56
    s_mul_i32 s67, s55, {64*1280}
    s_mov_b32 s42, 25600
    s_mul_i32 s61, {sCA}, 1600
    s_mov_b32 m0, {WPHI_LDS}
    v_mov_b32 v16, 0
    v_mov_b32 v17, 0
    v_mov_b32 v18, 0
    v_mov_b32 v19, 0
    v_add_u32 v20, {WPHI_LDS + 2048}, v2
    """)
    prologue2(A)
    A(f"""
    s_mov_b32 s40, s12
    s_mov_b32 s41, s13
    ds_write_b128 v20, v[16:19]
    buffer_load_dwordx4 v2, {SSRC}, s61 offen lds
    buffer_load_dwordx4 v2, {SSRC}, s61 offen offset:1024 lds
    """)
    def xchunk(j, slot):
        A(f"s_add_u32 m0, s66, {slot*16384}\ns_add_u32 s61, s67, {j*128}")
        for i in range(8):
            A(f"buffer_load_dwordx4 v{8 + i % 2}, {SX}, s61 offen lds")
            if i < 7: A(f"s_add_u32 m0, m0, 1024\ns_add_u32 s61, s61, {8*1280}")
    A("s_barrier")
    for j in range(2): xchunk(j, j)
    A("s_call_b64 s[80:81], L_addr")
    for j in range(2, 7): xchunk(j, j)
    stamp(A, cfg, 1)
    A(f"{lJ}:")
    A.cond -= 1
    A("s_waitcnt vmcnt(32) lgkmcnt(0)\ns_barrier")
    stamp(A, cfg, 4)
    A.cond += 1
    A(f"""
    s_cmp_ge_u32 {sWAVE}, 2
    s_cbranch_scc1 {lNOX}
    s_lshl_b32 s58, {sWAVE}, 4
    s_add_u32 s58, s58, {sCA}
    s_lshl_b32 s58, s58, 7
    s_add_u32 s58, s58, {FLG}
    s_lshl_b32 s59, {sRA}, 2
    s_waitcnt vmcnt(8)
    """)
    flag_store(A)
    stamp(A, cfg, 3)
    A(f"""
    s_mov_b32 s76, 0
    s_cmp_ge_u32 s65, 136
    s_cbranch_scc1 {lNOX}
    s_cmp_ge_u32 s65, 56
    s_cbranch_scc1 {lWO}
    s_mov_b32 s76, 1
    s_add_u32 s62, s65, 1024
    """)
    side_params(A, "s62", 72)
    dma_rows(A, 4, 8192)
    A(f"""
    s_branch {lNOX}
    {lWO}:
    s_mov_b32 s76, 2
    s_sub_u32 s62, s65, 56
    s_lshr_b32 s56, s62, 3
    s_and_b32 s57, s62, 7
    s_mov_b32 s40, s14
    s_mov_b32 s41, s15
    s_mov_b32 s42, 819200
    s_mov_b32 s60, 1280
    s_mul_i32 s61, s57, {80*1280}
    s_lshl_b32 s55, s56, 7
    s_add_u32 s61, s61, s55
    s_mul_i32 s72, s56, {4*20480}
    s_mul_i32 s55, s57, 2560
    s_add_u32 s72, s72, s55
    s_add_u32 s72, s72, {WO}
    s_mov_b32 s73, 20480
    """)
    dma_rows(A, 10, 8192)
    A(f"{lNOX}:")
    A.cond -= 1
    x_reads(A, [(0, 0), (1, 1), (2, 2)], True)
    A("s_barrier")
    A.cond += 1
    A(f"s_cmp_lt_u32 {sWAVE}, 2\ns_cbranch_scc1 {lR2}")
    for j in range(7, 10): xchunk(j, j - 7)
    A(f"{lR2}:")
    A.cond -= 1
    A("s_waitcnt vmcnt(24)\ns_barrier")
    x_reads(A, [(3, 3), (4, 4), (5, 5), (6, 6)], False)
    A.cond += 1
    A(f"s_cmp_lt_u32 {sWAVE}, 2\ns_cbranch_scc1 {lL4}\ns_waitcnt vmcnt(0)\n{lL4}:")
    A.cond -= 1
    A("s_barrier")
    stamp(A, cfg, 5)
    x_reads(A, [(7, 0), (8, 1), (9, 2)], False)
    A(f"""
    v_add_f32 v120, v120, v122
    v_add_f32 v121, v121, v123
    v_mov_b32 v122, v120
    v_mov_b32 v123, v121
    v_permlane32_swap_b32 v120, v122
    v_permlane32_swap_b32 v121, v123
    v_add_f32 v120, v120, v122
    v_add_f32 v121, v121, v123
    v_mul_f32 v120, 0xbacccccd, v120
    v_mul_f32 v121, 0x3acccccd, v121
    v_fma_f32 v122, -v120, v120, v121
    v_max_f32 v122, 0, v122
    v_add_f32 v122, 0x3727c5ac, v122
    v_rsq_f32 v{RSTD}, v122
    """)
    split_hi_lo(A, 120, 122, MF + 1, 123)
    A(f"""
    v_mul_f32 v{LSC}, s84, v{RSTD}
    v_lshl_or_b32 v{MF}, v122, 16, v122
    v_mov_b32 v{MF+2}, 0
    v_mov_b32 v{MF+3}, 0
    s_mov_b32 exec_lo, 0
    v_mov_b32 v{MF}, 0
    v_mov_b32 v{MF+1}, 0
    s_mov_b64 exec, -1
    """)
    A.cond += 1
    A(f"s_cmp_ge_u32 {sWAVE}, 2\ns_cbranch_scc1 {lSD}\ns_waitcnt vmcnt(0)")
    side_process(A, 0, 66, 32)
    side_process(A, 4096, 69, 52)
    A(f"s_cmp_eq_u32 s76, 0\ns_cbranch_scc1 {lSD}\ns_cmp_eq_u32 s76, 2\ns_cbranch_scc1 {lX2}")
    side_process(A, 8192, 72, 72)
    A(f"s_branch {lSD}\n{lX2}:")
    A("v_mad_u32_u24 v92, v12, s73, v13")
    rho = lambda b, e: (2 * (e // 20) + b) * 20 + e % 20
    for half in range(2):
        for k in range(5):
            b, q = half, k
            R = (72, 124)[half] + 4 * k
            A(f"ds_read_b64_tr_b16 v[{R}:{R+1}], v5 offset:{8192 + rho(b, 8*q)*128}")
            A(f"ds_read_b64_tr_b16 v[{R+2}:{R+3}], v5 offset:{8192 + rho(b, 8*q+4)*128}")
        for k in range(5):
            R = (72, 124)[half] + 4 * k
            A(f"s_waitcnt lgkmcnt({8-2*k})")
            A(f"buffer_store_dwordx4 v[{R}:{R+3}], v92, {SWS}, s72 offen offset:{(half*5+k)*256}{SC}")
    A(f"s_nop 1\n{lSD}:")
    A.cond -= 1
    A("v_add_u32 v3, 0x10000, v2\nv_add_u32 v4, 0x20000, v2")
    A.cond += 1
    lp, ld = A.label("poll"), A.label("pd")
    A(f"s_cmp_lg_u32 {sWAVE}, 2\ns_cbranch_scc1 {lPE}")
    nonce_fetch(A)
    A(f"""
    s_lshl_b32 s58, {sCA}, 7
    s_add_u32 s58, s58, {FLG}
    v_and_b32 v6, 15, v1
    v_lshrrev_b32 v7, 4, v1
    v_lshlrev_b32 v6, 2, v6
    v_lshl_add_u32 v6, v7, 11, v6
    s_mov_b64 exec, 0xffffffff
    s_mov_b32 s57, 0
    {lp}:
    buffer_load_dword v7, v6, {SWS}, s58 offen sc1
    s_add_u32 s57, s57, 1
    s_waitcnt vmcnt(0)
    v_cmp_ne_u32 vcc, {sNONCE}, v7
    s_cmp_ge_u32 s57, {SPIN}
    s_cbranch_scc1 {ld}
    s_cbranch_vccnz {lp}
    {ld}:
    s_mov_b64 exec, -1
    {lPE}:
    """)
    A.cond -= 1
    stamp(A, cfg, 6)
    A("s_barrier")
    A.vm = []

def a_addresses(A):
    A("L_addr:")
    A(f"""
    v_and_b32 v192, 31, v1
    v_lshrrev_b32 v193, 5, v1
    s_lshl_b32 s90, {sWAVE}, 5
    v_add_u32 v194, s90, v192
    v_lshl_add_u32 v194, v193, 7, v194
    v_lshlrev_b32 v194, 7, v194
    v_add_u32 v194, {PKV_LDS}, v194
    v_bfe_u32 v195, v1, 1, 1
    v_lshlrev_b32 v195, 2, v195
    v_bfe_u32 v196, v1, 2, 1
    v_lshl_add_u32 v195, v196, 1, v195
    v_and_b32 v196, 1, v1
    v_add_u32 v195, v195, v196
    v_lshl_add_u32 v{aPKW}, v195, 4, v194
    v_mul_u32_u24 v194, 336, v193
    v_lshl_add_u32 v{aKVS}, v192, 4, v194
    s_lshr_b32 s90, {sWAVE}, 1
    s_and_b32 s6, {sWAVE}, 1
    s_lshl_b32 s86, s90, 14
    s_add_u32 s86, s86, {PKV_LDS}
    v_bfe_u32 v192, v1, 2, 2
    v_lshl_add_u32 v192, v193, 3, v192
    v_lshlrev_b32 v192, 7, v192
    v_add_u32 v192, s86, v192
    v_and_b32 v194, 1, v1
    v_lshl_add_u32 v192, v194, 3, v192
    v_bfe_u32 v194, v1, 4, 1
    v_bfe_u32 v195, v1, 1, 1
    v_lshl_add_u32 v194, v194, 1, v195
    v_bfe_u32 v195, v1, 3, 1
    v_lshlrev_b32 v195, 2, v195
    v_bfe_u32 v196, v1, 2, 1
    v_add_u32 v195, v195, v196
    s_lshl_b32 s87, s6, 2
    v_add_u32 v196, s87, v194
    v_add_u32 v197, 5, v194
    v_min_u32 v197, 7, v197
    v_xor_b32 v196, v196, v195
    v_xor_b32 v197, v197, v195
    v_lshl_add_u32 v{aTRA0}, v196, 4, v192
    v_lshl_add_u32 v{aTRB0}, v197, 4, v192
    v_xor_b32 v196, 2, v196
    v_xor_b32 v197, 2, v197
    v_lshl_add_u32 v{aTRA1}, v196, 4, v192
    v_lshl_add_u32 v{aTRB1}, v197, 4, v192
    s_lshl_b32 s3, {sCA}, 4
    s_add_u32 s3, s3, {sRA}
    s_mul_i32 s3, s3, 6784
    s_mul_i32 s87, s90, 3360
    s_add_u32 s3, s3, s87
    s_mul_i32 s87, s6, {8*336}
    s_add_u32 s3, s3, s87
    s_add_u32 s3, s3, {KVP}
    v_lshlrev_b32 v{aKVL}, 4, v0
    """)
    for rnd, dst in ((0, aKVF), (1, aKVF2)):
        A(f"""
        v_add_u32 v199, {256*rnd}, v0
        v_mul_u32_u24 v192, 3121, v199
        v_lshrrev_b32 v192, 16, v192
        v_mul_u32_u24 v193, 21, v192
        v_sub_u32 v193, v199, v193
        v_cmp_le_u32 s[90:91], 10, v192
        v_subrev_u32 v195, 10, v192
        v_cndmask_b32 v195, v192, v195, s[90:91]
        v_cndmask_b32 v196, 0, 1, s[90:91]
        v_and_b32 v194, 1, v195
        v_lshrrev_b32 v195, 1, v195
        v_lshrrev_b32 v197, 4, v193
        v_and_b32 v198, 15, v193
        v_mad_u32_u24 v195, v197, 5, v195
        v_lshlrev_b32 v195, 10, v195
        v_lshl_add_u32 v195, v194, 3, v195
        v_lshrrev_b32 v197, 2, v198
        v_lshlrev_b32 v197, 3, v197
        v_and_b32 v198, 3, v198
        v_add_u32 v197, v197, v198
        v_mad_u32_u24 v197, v196, 36, v197
        v_lshl_add_u32 v195, v197, 4, v195
        v_add_u32 v{dst}, {KVF_LDS}, v195
        """)
    A(f"""
    s_mul_i32 s4, {sCA}, {16*6784}
    s_add_u32 s4, s4, {KVP}
    v_and_b32 v192, 15, v1
    v_bfe_u32 v193, v1, 4, 1
    v_lshrrev_b32 v194, 5, v1
    v_mul_u32_u24 v193, 20480, v193
    v_mul_u32_u24 v194, 1280, v194
    v_lshl_add_u32 v192, v192, 4, v193
    v_add_u32 v{aOST}, v192, v194
    s_lshl_b32 s5, {sRA}, 2
    s_add_u32 s5, s5, {sWAVE}
    s_mul_i32 s5, s5, 40960
    s_lshr_b32 s90, {sCA}, 1
    s_mul_i32 s90, s90, 2560
    s_add_u32 s5, s5, s90
    s_add_u32 s5, s5, {OF}
    v_mul_u32_u24 v{aZ}, 40, v0
    v_add_u32 v{aZ}, {KVF_LDS}, v{aZ}
    s_mul_i32 s53, {sCA}, 163840
    s_lshl_b32 s7, {sWAVE}, 10
    s_add_u32 s53, s53, s7
    s_add_u32 s53, s53, {WQ}
    s_lshl_b32 s54, {sCA}, 13
    s_add_u32 s54, s54, {CSQ}
    s_lshl_b32 s90, {sWAVE}, 9
    s_add_u32 s90, s90, {HOLE_LDS}
    v_and_b32 v192, 31, v1
    v_lshlrev_b32 v{aHW}, 4, v192
    v_add_u32 v{aHW}, s90, v{aHW}
    v_lshlrev_b32 v{aHR}, 2, v192
    v_add_u32 v{aHR}, s90, v{aHR}
    s_mul_i32 s88, {sC}, {7*20480}
    s_add_u32 s88, s88, s7
    s_mov_b32 s89, s7
    s_lshr_b32 s90, {sC}, 1
    s_mul_i32 s92, s90, {5*20480}
    s_mul_i32 s91, {sWAVE}, 5120
    s_add_u32 s92, s92, s91
    s_add_u32 s92, s92, {WO}
    s_mul_i32 s52, {sWAVE}, 14
    s_cmp_eq_u32 {sWAVE}, 3
    s_cselect_b32 s52, 41, s52
    s_lshl_b32 s52, s52, 10
    s_mul_i32 s93, s90, {5*55296}
    s_add_u32 s93, s93, s52
    s_add_u32 s93, s93, {W2}
    
    v_and_b32 v116, 31, v1
    v_lshrrev_b32 v117, 5, v1
    v_bfe_u32 v118, v1, 1, 3
    v_xor_b32 v117, v117, v118
    s_lshl_b32 s90, {sWAVE}, 5
    v_add_u32 v116, s90, v116
    v_lshlrev_b32 v116, 7, v116
    v_lshl_add_u32 v112, v117, 4, v116
    v_xor_b32 v113, 32, v112
    v_xor_b32 v114, 64, v112
    v_xor_b32 v115, 96, v112
    v_mov_b32 v120, 0
    v_mov_b32 v121, 0
    v_mov_b32 v122, 0
    v_mov_b32 v123, 0
    v_and_b32 v192, 31, v1
    v_lshrrev_b32 v193, 5, v1
    v_bfe_u32 v194, v1, 2, 1
    v_lshrrev_b32 v195, 3, v192
    v_and_b32 v196, 3, v1
    v_lshl_add_u32 v195, v195, 2, v196
    v_mul_u32_u24 v196, 800, v193
    v_lshl_add_u32 v196, v195, 1, v196
    v_mov_b32 v197, 2048
    v_cmp_eq_u32 s[90:91], v193, v194
    v_add_u32 v198, 32, v196
    v_cndmask_b32 v196, v197, v196, s[90:91]
    v_cndmask_b32 v198, v197, v198, s[90:91]
    v_cmp_gt_u32 s[90:91], 8, v192
    v_add_u32 v{aWM}, {WPHI_LDS}, v196
    v_cndmask_b32 v198, v197, v198, s[90:91]
    v_add_u32 v{aWL}, {WPHI_LDS}, v198
    s_setpc_b64 s[80:81]
    """)

W1G = f"s_mov_b32 m0, s89\ns_add_u32 s89, s89, 4096\nbuffer_load_dwordx4 v2, {SW1}, s88 offen{SC} lds\ns_add_u32 s88, s88, 4096"

def woreg(T, st):
    k = 5 * T + st
    return ar(160 + 4 * k, 4) if k < 24 else vr(WO25, 4)
def wo_groups():
    g = []
    for T in range(5):
        for st in range(5):
            pre = f"s_add_u32 s98, s92, {T*20480 + (st//4)*4096}\n" if st % 4 == 0 else ""
            g.append((pre + f"buffer_load_dwordx4 {woreg(T,st)}, v2, {SWS}, s98 offen offset:{(st%4)*1024}{SC}", "wo"))
    return g
def w2reg(step, T):
    k = step * 5 + T
    return ar(4 * k, 4) if k < 64 else vr(216 + 4 * (k - 64), 4)
def w2_groups(k0, k1):
    items = sorted(((k % 5, k // 5) for k in range(k0, k1)))
    g = []; cur = None
    for T, st in items:
        key = (T, st // 4)
        pre = f"s_add_u32 s99, s93, {T*55296 + (st//4)*4096}\n" if key != cur else ""
        cur = key
        g.append((pre + f"buffer_load_dwordx4 {w2reg(st,T)}, v2, {SWS}, s99 offen offset:{(st%4)*1024}{SC}", "w2"))
    return g

def softmax_routine(A, ndma):
    A("L_smx:\ns_nop 1")
    body = []
    B = body.append
    for u in range(3):
        A(f"v_mfma_f32_32x32x16_bf16 {vr(PP,16)}, {vr(WM+4*u,4)}, {vr(U+4*u,4)}, {'0' if u==0 else vr(PP,16)}")
    for u in range(3):
        A(f"v_mfma_f32_32x32x16_bf16 {vr(PL,16)}, {vr(WLf+4*u,4)}, {vr(U+4*u,4)}, {'0' if u==0 else vr(PL,16)}")
    A(W1G); A(W1G)
    p = [PP + i for i in range(20)]
    for k in range(4):
        B(f"v_max3_f32 v{TM+k}, v{p[4*k]}, v{p[4*k+1]}, v{p[4*k+2]}")
        B(f"v_min3_f32 v{TM+4+k}, v{p[4*k]}, v{p[4*k+1]}, v{p[4*k+2]}")
    for k in range(4):
        B(f"v_max3_f32 v{TM+k}, v{TM+k}, v{p[4*k+3]}, v{p[16+k]}")
        B(f"v_min3_f32 v{TM+4+k}, v{TM+4+k}, v{p[4*k+3]}, v{p[16+k]}")
    B(f"v_max3_f32 v{TM}, v{TM}, v{TM+1}, v{TM+2}")
    B(f"v_min3_f32 v{TM+4}, v{TM+4}, v{TM+5}, v{TM+6}")
    B(f"v_max_f32 v{TM}, v{TM}, v{TM+3}")
    B(f"v_min_f32 v{TM+4}, v{TM+4}, v{TM+7}")
    B(f"v_mul_f32 v{TM+8}, v{LSC}, v{TM}")
    B(f"v_mul_f32 v{TM+10}, v{LSC}, v{TM+4}")
    for i in range(0, 20, 2):
        B(f"v_pk_fma_f32 {vr(EP+i,2)}, {vr(PP+i,2)}, {vr(LSC,2)}, {vr(TM+8,2)} op_sel_hi:[1,0,0] neg_lo:[0,0,1] neg_hi:[0,0,1]")
    for i in range(0, 20, 2):
        B(f"v_pk_fma_f32 {vr(EN+i,2)}, {vr(PP+i,2)}, {vr(LSC,2)}, {vr(TM+10,2)} op_sel_hi:[1,0,0] neg_lo:[1,0,0] neg_hi:[1,0,0]")
    for i in range(40):
        B(f"v_exp_f32 v{EP+i}, v{EP+i}")
    ET = ((EP, TM), (EN, TM + 6))
    for E, t in ET:
        B(f"v_pk_add_f32 {vr(t,2)}, {vr(E,2)}, {vr(E+2,2)}")
        B(f"v_pk_add_f32 {vr(t+2,2)}, {vr(E+4,2)}, {vr(E+6,2)}")
        B(f"v_pk_add_f32 {vr(t+4,2)}, {vr(E+8,2)}, {vr(E+10,2)}")
    for E, t in ET:
        B(f"v_pk_add_f32 {vr(t,2)}, {vr(t,2)}, {vr(E+12,2)}")
        B(f"v_pk_add_f32 {vr(t+2,2)}, {vr(t+2,2)}, {vr(E+14,2)}")
        B(f"v_pk_add_f32 {vr(t+4,2)}, {vr(t+4,2)}, {vr(E+16,2)}")
    for E, t in ET:
        B(f"v_pk_add_f32 {vr(t,2)}, {vr(t,2)}, {vr(E+18,2)}")
        B(f"v_pk_add_f32 {vr(t+2,2)}, {vr(t+2,2)}, {vr(t+4,2)}")
    for E, t in ET: B(f"v_pk_add_f32 {vr(t,2)}, {vr(t,2)}, {vr(t+2,2)}")
    for E, t in ET: B(f"v_add_f32 v{t}, v{t}, v{t+1}")
    for E, t in ET: B(f"v_rcp_f32 v{t}, v{t}")
    for E, t in ET:
        for i in range(0, 20, 2):
            B(f"v_pk_mul_f32 {vr(E+i,2)}, {vr(E+i,2)}, {vr(t,2)} op_sel_hi:[1,0]")
    for i in range(20):
        B(f"v_cvt_pk_bf16_f32 v{PH+i}, v{EP+2*i}, v{EP+2*i+1}")
    step = len(body) // (ndma - 2)
    left = ndma - 2
    for i, l in enumerate(body):
        A(l)
        if left and i % step == step - 1:
            A(W1G); left -= 1
    assert left == 0
    A("s_setpc_b64 s[80:81]")

NSMX = 12
def call_smx(A):
    A("s_call_b64 s[80:81], L_smx\ns_nop 1")
    for _ in range(NSMX): A.vm.append(("w1", True))

def lds_base(off):
    return ("v2", "v3", "v4")[off >> 16], off & 0xffff

def store_parity(A, par, P, ntile, voff, soff, stride, tag):
    lo, le = A.label("odd"), A.label("se")
    A.cond += 1
    A(f"s_bitcmp1_b32 {par}, 0\ns_cbranch_scc1 {lo}")
    h = ntile // 2
    for k in range(h):
        A(f"buffer_store_dwordx4 {vr(P+4*k,4)}, {voff}, {SWS}, {soff} offen offset:{k*stride}{SC}", tag)
    A(f"buffer_store_dwordx2 {vr(P+4*h,2)}, {voff}, {SWS}, {soff} offen offset:{h*stride}{SC}", tag)
    A(f"s_branch {le}\n{lo}:")
    A(f"buffer_store_dwordx2 {vr(P,2)}, {voff}, {SWS}, {soff} offen offset:{h*stride+8}{SC}", tag)
    for k in range(h):
        o = (h + 1 + k) * stride
        if o >= 4096:
            A(f"s_add_u32 s56, {soff}, 4096")
            A(f"buffer_store_dwordx4 {vr(P+2+4*k,4)}, {voff}, {SWS}, s56 offen offset:{o-4096}{SC}", tag)
        else:
            A(f"buffer_store_dwordx4 {vr(P+2+4*k,4)}, {voff}, {SWS}, {soff} offen offset:{o}{SC}", tag)
    A(f"{le}:")
    A.cond -= 1

def phase_A(A, cfg):
    A("; ---- phase A ----")
    WL = f"buffer_load_dwordx4 v2, {SWS}, s53 offen{SC} lds\ns_add_u32 m0, m0, 4096\ns_add_u32 s53, s53, 4096"
    A("s_mov_b32 m0, s7")
    AHEAD = cfg.aheadA
    A(WL, "b0"); A(WL, "b0"); A(WL, "b0")
    for i in range(8):
        A(f"buffer_load_dwordx4 {vr(124+4*i,4)}, v2, {SWS}, s54 offen offset:{(i%4)*1024}{SC}", "cs")
        if i == 3: A("s_add_u32 s54, s54, 4096")
    for b in range(1, AHEAD):
        for _ in range(3): A(WL, f"b{b}")
    accs = (ACK, ACV, ACL)
    def reads(blk):
        buf = WA0 if blk % 2 == 0 else WA1
        out = []
        for j in range(12):
            b, o = lds_base((12 * blk + j) * 1024)
            out.append(f"ds_read_b128 {ar(buf+4*j,4)}, {b} offset:{o}")
        return out
    side = []
    for i in range(1, 8):
        side += [f"v_add_f32 v{124+j}, v{124+j}, v{124+4*i+j}" for j in range(4)]
    side += [f"v_mov_b32 v{128+j}, v{124+j}" for j in range(4)]
    side += [f"v_permlane32_swap_b32 v{124+j}, v{128+j}" for j in range(4)]
    side += [f"v_add_f32 v{124+j}, v{124+j}, v{128+j}" for j in range(4)]
    side += ["ds_write_b128 v235, v[124:127]"]
    side2 = [f"ds_read_b32 v{124+T}, v240 offset:{T*128}" for T in range(4)]
    side3 = []
    for T in range(4):
        F = CSF + 4 * T
        side3 += [f"v_cvt_pk_bf16_f32 v{F+1}, v{124+T}, 0", f"v_lshlrev_b32 v{128+T}, 16, v{F+1}", f"v_sub_f32 v{128+T}, v{124+T}, v{128+T}",
                  f"v_cvt_pk_bf16_f32 v{F}, v{124+T}, v{128+T}", f"v_mov_b32 v{F+2}, 0", f"v_mov_b32 v{F+3}, 0"]
    ph1 = []
    for d in range(20):
        op = "ds_read_u16_d16_hi" if d % 2 else "ds_read_u16"
        ph1 += [f"{op} v{156 + d}, v{aWM} offset:{d*40}", f"{op} v{176 + d}, v{aWL} offset:{d*40}"]
    ph2 = [f"v_or_b32 v{WM+i}, v{156+2*i}, v{157+2*i}" for i in range(10)] + [f"v_or_b32 v{WLf+i}, v{176+2*i}, v{177+2*i}" for i in range(10)]
    ph2 += [f"v_mov_b32 v{r}, 0" for r in (WM+10, WM+11, WLf+10, WLf+11)]
    stamp(A, cfg, 7)
    A.wait("b0"); A("s_barrier")
    signal_global(A, 5)
    for r in reads(0): A(r)
    lchk, lslow = A.label("chk"), A.label("slow")
    for blk in range(10):
        buf = WA0 if blk % 2 == 0 else WA1
        nxt = []
        if blk + AHEAD < 10: A.bg += [(WL, f"b{blk+AHEAD}")] * 3
        if blk >= 5: A.bg += [(WL, "tq")] * 2
        if blk == 7:
            A.bg.insert(0, (f"v_lshlrev_b32 v6, 7, v1\ns_mov_b32 s58, {FLG + 5*8192}\nbuffer_load_dwordx4 v[196:199], v6, {SWS}, s58 offen sc1", "f5"))
        if blk + 1 < 10:
            A.wait(f"b{blk+1}", "lgkmcnt(0)")
            A("s_barrier")
            nxt = reads(blk + 1)
        else:
            A.wait("f5", "lgkmcnt(0)")
            A.cond += 1
            A(f"""
            s_cmp_lg_u32 {sWAVE}, 0
            s_cbranch_scc1 {lchk}
            v_xor_b32 v196, {sNONCE}, v196
            v_xor_b32 v197, {sNONCE}, v197
            v_xor_b32 v198, {sNONCE}, v198
            v_xor_b32 v199, {sNONCE}, v199
            v_or3_b32 v196, v196, v197, v198
            v_or_b32 v196, v196, v199
            v_cmp_ne_u32 vcc, 0, v196
            s_cbranch_vccz {lchk}
            """)
            poll_global(A, 5, 196)
            A(f"{lchk}:")
            A.cond -= 1
            A("s_barrier")
        if blk == 1: A.wait("cs")
        sw = side if blk in (1, 2) else side2 if blk == 3 else side3 if blk in (4, 5) else []
        for j in range(12):
            s = 4 * blk + j // 3
            acc = accs[j % 3]
            A(f"v_mfma_f32_32x32x16_bf16 {vr(acc,16)}, {ar(buf+4*j,4)}, {ar(4*s,4)}, {'0' if s==0 else vr(acc,16)}")
            if nxt: A(nxt[j])
            if j % 2 == 0: A.sprinkle(1)
            for _ in range(2):
                if sw: A(sw.pop(0))
            if blk < 4 and ph1: A(ph1.pop(0))
            if blk in (6, 7) and ph2: A(ph2.pop(0))
    assert not ph1 and not ph2
    assert not A.bg and not side and not side2 and not side3
    for T in range(3):
        A(f"v_mfma_f32_32x32x16_bf16 {vr(accs[T],16)}, {vr(CSF+4*T,4)}, {vr(MF,4)}, {vr(accs[T],16)}")
    stamp(A, cfg, 12)
    A(f"""
    v_mov_b32 v{U+10}, 0
    v_mov_b32 v{U+11}, 0
    v_mov_b32 v{VV+10}, 0x3f80
    v_mov_b32 v{VV+11}, 0
    """)
    A.bg += wo_groups()
    A.sprinkle(cfg.k_wo // 3)
    for ch in range(1, 8): A(f"v_xor_b32 v{96+ch}, {ch*16}, v{aPKW}")
    for i in range(8): A(f"v_cvt_pk_bf16_f32 v{U+i}, v{ACK+2*i}, v{ACK+2*i+1}")
    A.sprinkle(cfg.k_wo // 3)
    for i in range(8): A(f"v_pk_mul_f32 {vr(ACV+2*i,2)}, {vr(ACV+2*i,2)}, {vr(RSTD,2)} op_sel_hi:[1,0]")
    for i in range(8): A(f"v_cvt_pk_bf16_f32 v{VV+i}, v{ACV+2*i}, v{ACV+2*i+1}")
    A.sprinkle(cfg.k_wo // 3)
    A(f"""
    v_cvt_pk_bf16_f32 v{U+8}, v{ACL+4}, v{ACL+5}
    v_cvt_pk_bf16_f32 v{U+9}, v{ACL+6}, v{ACL+7}
    v_pk_mul_f32 {vr(ACL+8,2)}, {vr(ACL+8,2)}, {vr(RSTD,2)} op_sel_hi:[1,0]
    v_pk_mul_f32 {vr(ACL+10,2)}, {vr(ACL+10,2)}, {vr(RSTD,2)} op_sel_hi:[1,0]
    v_cvt_pk_bf16_f32 v{QL}, v{ACL}, v{ACL+1}
    v_cvt_pk_bf16_f32 v{QL+1}, v{ACL+2}, v{ACL+3}
    v_cvt_pk_bf16_f32 v{VV+8}, v{ACL+8}, v{ACL+9}
    v_cvt_pk_bf16_f32 v{VV+9}, v{ACL+10}, v{ACL+11}
    """)
    for ch in range(5, 8): A(f"ds_write_b128 v{96+ch}, {vr(VV+4*(ch-5),4)}")
    call_smx(A)
    for ch in range(5):
        A(f"ds_write_b128 v{aPKW if ch == 0 else 96+ch}, {vr(PH+4*ch,4)}")
    A.wait("tq", "lgkmcnt(0)")
    A("s_barrier")
    for s in range(8):
        b = 112 + 8 * s
        A(f"ds_read_b64_tr_b16 {vr(b,2)}, v{aTRA0} offset:{s*2048}")
        A(f"ds_read_b64_tr_b16 {vr(b+2,2)}, v{aTRA1} offset:{s*2048+512}")
        A(f"ds_read_b64_tr_b16 {vr(b+4,2)}, v{aTRB0} offset:{s*2048}")
        A(f"ds_read_b64_tr_b16 {vr(b+6,2)}, v{aTRB1} offset:{s*2048+512}")
        if s >= 2:
            t = s - 2
            A("s_waitcnt lgkmcnt(8)")
            A(f"v_mfma_f32_32x32x16_bf16 {vr(48,16)}, {vr(112+8*t,4)}, {vr(116+8*t,4)}, {'0' if t==0 else vr(48,16)}")
    for t in (6, 7):
        A(f"s_waitcnt lgkmcnt({4 if t==6 else 0})")
        A(f"v_mfma_f32_32x32x16_bf16 {vr(48,16)}, {vr(112+8*t,4)}, {vr(116+8*t,4)}, {vr(48,16)}")
    P2 = 176
    for s in range(8):
        b, o = lds_base((120 + s) * 1024)
        A(f"ds_read_b128 {vr(P2+4*(s%10),4)}, {b} offset:{o}")
    lsk = A.label("kvst")
    A(f"""
    s_mov_b32 s55, 0x1fffff
    s_mov_b32 exec_lo, s55
    s_mov_b32 exec_hi, s55
    s_cmp_eq_u32 s6, 1
    """)
    A(f"buffer_store_dwordx4 {vr(48,4)}, v{aKVS}, {SWS}, s3 offen sc1", "kvp")
    A.cond += 1
    A(f"s_cbranch_scc1 {lsk}")
    for k in range(1, 4):
        A(f"buffer_store_dwordx4 {vr(48+4*k,4)}, v{aKVS}, {SWS}, s3 offen offset:{672*k} sc1", "kvp")
    A(f"{lsk}:")
    A.cond -= 1
    A("s_mov_b64 exec, -1")
    stamp(A, cfg, 13)
    SIG = cfg.p2sig
    for s in range(40):
        if s == SIG:
            signal_group(A, 1, sCA, sRA, "kvp")
            stamp(A, cfg, 14)
        A(f"s_waitcnt lgkmcnt({min(7, 39-s)})")
        A(f"v_mfma_f32_32x32x16_bf16 {vr(ACQ,16)}, {vr(P2+4*(s%10),4)}, {ar(4*s,4)}, {'0' if s==0 else vr(ACQ,16)}")
        if s + 8 < 40:
            b, o = lds_base((120 + s + 8) * 1024)
            A(f"ds_read_b128 {vr(P2+4*((s+8)%10),4)}, {b} offset:{o}")
        if s >= SIG and (s - SIG) % cfg.p2every == 0: A.sprinkle(1)
    A(f"v_mfma_f32_32x32x16_bf16 {vr(ACQ,16)}, {vr(CSF+12,4)}, {vr(MF,4)}, {vr(ACQ,16)}")
    stamp(A, cfg, 15)
    A(f"""
    s_barrier
    v_mov_b32 v32, 0
    v_mov_b32 v33, 0
    v_mov_b32 v{U+8}, v{QL}
    v_mov_b32 v{U+9}, v{QL+1}
    v_mov_b32 v{U+10}, 0
    v_mov_b32 v{U+11}, 0
    v_add_u32 v34, 4096, v{aKVL}
    v_min_u32 v34, 6704, v34
    """)
    for k in range(5): A(f"ds_write_b64 v{aZ}, v[32:33] offset:{8*k}")
    for i in range(8): A(f"v_cvt_pk_bf16_f32 v{U+i}, v{ACQ+2*i}, v{ACQ+2*i+1}")
    call_smx(A)
    A(f"v_cmp_gt_u32 vcc, 164, v0\ns_waitcnt lgkmcnt(0)\ns_mov_b64 s[86:87], vcc")
    stamp(A, cfg, 16)
    wait_group(A, 1, sCA)
    stamp(A, cfg, 17)
    RB = 40
    for p in range(16):
        A(f"buffer_load_dwordx4 {vr(RB+8*p,4)}, v{aKVL}, {SWS}, s4 offen sc1", f"p{p}")
        A(f"buffer_load_dwordx4 {vr(RB+8*p+4,4)}, v34, {SWS}, s4 offen sc1", f"p{p}")
        if p < 15: A("s_add_u32 s4, s4, 6784")
    for p in range(1, 16):
        A.wait(f"p{p}")
        for j in range(0, 8, 2):
            A(f"v_pk_add_f32 {vr(RB+j,2)}, {vr(RB+j,2)}, {vr(RB+8*p+j,2)}")
    for j in range(4): A(f"v_cvt_pk_bf16_f32 v{RB+j}, v{RB+2*j}, v{RB+2*j+1}")
    A(f"""
    ds_write_b64 v{aKVF}, {vr(RB,2)}
    s_mov_b64 exec, s[86:87]
    ds_write_b64 v{aKVF2}, {vr(RB+2,2)}
    s_mov_b64 exec, -1
    s_waitcnt lgkmcnt(0)
    s_barrier
    """)
    stamp(A, cfg, 18)
    b, o = lds_base(KVF_LDS)
    for i in (0, 5, 1, 6, 2, 7, 3, 8, 4, 9): A(f"ds_read_b128 {vr(40+4*i,4)}, {b} offset:{o + i*1024}")
    for s5 in range(5):
        for tau in range(2):
            i = tau * 5 + s5
            A(f"s_waitcnt lgkmcnt({9-2*s5-tau})")
            A(f"v_mfma_f32_32x32x16_bf16 {vr(96+16*tau,16)}, {vr(40+4*i,4)}, {vr(PH+4*s5,4)}, {'0' if s5==0 else vr(96+16*tau,16)}")
    A(f"v_add_f32 v34, 0x358637bd, v{96+20}\nv_rcp_f32 v34, v34")
    for i in range(0, 20, 2):
        A(f"v_pk_mul_f32 {vr(96+i,2)}, {vr(96+i,2)}, v[34:35] op_sel_hi:[1,0]")
    for i in range(10): A(f"v_cvt_pk_bf16_f32 v{40+i}, v{96+2*i}, v{97+2*i}")
    store_parity(A, sCA, 40, 5, f"v{aOST}", "s5", 256, "o")
    stamp(A, cfg, 19)

BRED_LDS = 100 * 1024
CF1 = 180
def phase_B(A, cfg):
    OFR, ACC = 8, 88
    A("; ---- phase B ----")
    A(f"""
    s_lshr_b32 s62, {sC}, 1
    s_and_b32 s63, {sC}, 1
    s_lshl_b32 s64, {sR}, 3
    s_lshl_b32 s55, s63, 2
    s_add_u32 s64, s64, s55
    s_add_u32 s65, s64, {sWAVE}
    s_mul_i32 s61, s65, 20480
    s_mul_i32 s55, s62, 160
    s_add_u32 s61, s61, s55
    v_and_b32 v8, 15, v1
    v_lshrrev_b32 v9, 4, v1
    v_mul_u32_u24 v8, 1280, v8
    v_lshl_add_u32 v8, v9, 3, v8
    v_lshrrev_b32 v9, 5, v1
    v_and_b32 v10, 31, v1
    v_min_u32 v10, 27, v10
    v_mul_u32_u24 v9, 6912, v9
    v_lshl_add_u32 v9, v10, 4, v9
    s_mul_i32 s66, {sC}, 448
    s_add_u32 s66, s66, {CS1}
    """)
    signal_group(A, 2, sRA, sCA, "o")
    stamp(A, cfg, 20)
    A.sprinkle(len(A.bg))
    for T in range(5):
        A(f"buffer_load_dwordx2 {vr(XR+2*T,2)}, v8, {SX}, s61 offen offset:{T*32}", "xr")
    for i in range(10):
        A(f"buffer_load_dwordx4 {vr(12+4*i,4)}, v9, {SWS}, s66 offen{SC}", "c1")
        if i < 9: A(f"s_add_u32 s66, s66, {2*6912}")
    for _ in range(25 - 2 * NSMX): A(W1G, "w1")
    A.bg += w2_groups(0, 40)
    A.sprinkle(cfg.w2_h2)
    for i in range(4):
        A(f"""
        s_add_u32 s55, {sWAVE}, {i}
        s_and_b32 s55, s55, 3
        s_add_u32 s56, s55, s64
        s_mul_i32 s{66+i}, s56, 20480
        s_mul_i32 s56, {sWAVE}, 5120
        s_add_u32 s{66+i}, s{66+i}, s56
        s_add_u32 s{66+i}, s{66+i}, {OF}
        s_mul_i32 s55, s55, 15360
        s_add_u32 s55, s55, {BRED_LDS + max(i-1,0)*5120}
        v_add_u32 v{168+i}, s55, v2
        """)
    A(f"""
    s_mul_i32 s60, s65, 20480
    s_lshr_b32 s55, s62, 1
    s_mul_i32 s55, s55, 5120
    s_add_u32 s60, s60, s55
    s_add_u32 s60, s60, {HF}
    s_lshl_b32 s61, s65, 10
    s_lshl_b32 s55, s62, 7
    s_add_u32 s61, s61, s55
    s_add_u32 s61, s61, {STT}
    v_lshlrev_b32 v172, 3, v1
    s_lshl_b32 s55, {sWAVE}, 9
    s_add_u32 s55, s55, {HOLE_LDS}
    v_lshlrev_b32 v10, 4, v10
    v_add_u32 v10, s55, v10
    v_and_b32 v11, 15, v1
    v_lshlrev_b32 v11, 2, v11
    v_add_u32 v11, s55, v11
    """)
    A.wait("c1")
    for i in range(1, 10):
        A(f"v_pk_add_f32 v[12:13], v[12:13], {vr(12+4*i,2)}\nv_pk_add_f32 v[14:15], v[14:15], {vr(14+4*i,2)}")
    for j in range(4): A(f"v_mov_b32 v{16+j}, v{12+j}")
    for j in range(4): A(f"v_permlane32_swap_b32 v{12+j}, v{16+j}")
    A("v_pk_add_f32 v[12:13], v[12:13], v[16:17]\nv_pk_add_f32 v[14:15], v[14:15], v[18:19]\nds_write_b128 v10, v[12:15]\ns_waitcnt lgkmcnt(0)")
    for T in range(7): A(f"ds_read_b32 v{20+T}, v11 offset:{T*64}")
    A("s_waitcnt lgkmcnt(0)")
    for T in range(7):
        F = CF1 + 4 * T
        A(f"""
        v_cvt_pk_bf16_f32 v{F+1}, v{20+T}, 0
        v_lshlrev_b32 v{F+2}, 16, v{F+1}
        v_sub_f32 v{F+2}, v{20+T}, v{F+2}
        v_cvt_pk_bf16_f32 v{F}, v{20+T}, v{F+2}
        """)
    wait_group(A, 2, sR)
    stamp(A, cfg, 21)
    def oload(st, i):
        if st < 4:
            A(f"buffer_load_dwordx4 {vr(OFR+4*(4*st+i),4)}, v2, {SWS}, s{66+i} offen offset:{st*1024}{SC}", f"o{st}{i}")
        else:
            A(f"s_add_u32 s55, s{66+i}, 4096\nbuffer_load_dwordx4 {vr(OFR+4*(4*st+i),4)}, v2, {SWS}, s55 offen{SC}", f"o{st}{i}")
    order = [(st, i) for st in range(5) for i in (1, 2, 3)] + [(st, 0) for st in range(5)]
    W = cfg.aheadB
    for e in order[:W]: oload(*e)
    wr = [(i, T) for i in (1, 2, 3) for T in range(5)]
    for n, (st, i) in enumerate(order):
        A.wait(f"o{st}{i}")
        for T in range(5):
            acc = vr(ACC + 4 * (5 * i + T), 4)
            A(f"v_mfma_f32_16x16x32_bf16 {acc}, {woreg(T,st)}, {vr(OFR+4*(4*st+i),4)}, {'0' if st==0 else acc}")
            if T == 1 and n + W < len(order): oload(*order[n + W])
            if i == 0 and (5 * st + T) >= 2 and wr and (5 * st + T) % 3 != 0:
                wi, wT = wr.pop(0)
                A(f"ds_write_b128 v{168+wi}, {vr(ACC+4*(5*wi+wT),4)} offset:{wT*1024}")
    for wi, wT in wr: A(f"ds_write_b128 v{168+wi}, {vr(ACC+4*(5*wi+wT),4)} offset:{wT*1024}")
    stamp(A, cfg, 22)
    A.sprinkle(cfg.w2_b)
    for T in range(5):
        A(f"v_lshlrev_b32 v{68+4*(T%2)}, 16, v{XR+2*T}\nv_and_b32 v{69+4*(T%2)}, 0xffff0000, v{XR+2*T}")
        A(f"v_lshlrev_b32 v{70+4*(T%2)}, 16, v{XR+2*T+1}\nv_and_b32 v{71+4*(T%2)}, 0xffff0000, v{XR+2*T+1}")
        A(f"v_pk_add_f32 {vr(ACC+4*T,2)}, {vr(ACC+4*T,2)}, {vr(68+4*(T%2),2)}")
        A(f"v_pk_add_f32 {vr(ACC+4*T+2,2)}, {vr(ACC+4*T+2,2)}, {vr(70+4*(T%2),2)}")
    A("s_waitcnt lgkmcnt(0)\ns_barrier")
    for k in range(15): A(f"ds_read_b128 {vr(8+4*k,4)}, v168 offset:{k*1024}")
    for k in range(15):
        T = k % 5
        A(f"s_waitcnt lgkmcnt({14-k})")
        A(f"v_pk_add_f32 {vr(ACC+4*T,2)}, {vr(ACC+4*T,2)}, {vr(8+4*k,2)}")
        A(f"v_pk_add_f32 {vr(ACC+4*T+2,2)}, {vr(ACC+4*T+2,2)}, {vr(10+4*k,2)}")
    for i in range(10): A(f"v_cvt_pk_bf16_f32 v{HK+i}, v{ACC+2*i}, v{ACC+2*i+1}")
    store_parity(A, "s62", HK, 5, "v2", "s60", 1024, "h")
    A(f"v_pk_add_f32 v[8:9], {vr(ACC,2)}, {vr(ACC+2,2)}\nv_pk_mul_f32 v[10:11], {vr(ACC,2)}, {vr(ACC,2)}")
    A(f"v_pk_fma_f32 v[10:11], {vr(ACC+2,2)}, {vr(ACC+2,2)}, v[10:11]")
    for i in range(4, 20, 2):
        A(f"v_pk_add_f32 v[8:9], v[8:9], {vr(ACC+i,2)}\nv_pk_fma_f32 v[10:11], {vr(ACC+i,2)}, {vr(ACC+i,2)}, v[10:11]")
    A("v_add_f32 v8, v8, v9\nv_add_f32 v9, v10, v11")
    allreduce_16_32(A, [(8, 10), (9, 11)])
    A("s_mov_b64 exec, 0xffff")
    A(f"buffer_store_dwordx2 v[8:9], v172, {SWS}, s61 offen sc1", "h")
    A("s_mov_b64 exec, -1")
    stamp(A, cfg, 23)

WBA, CS_A = 196, 228
def phase_C(A, cfg):
    HFR, ACC, ST = 8, 168, 224
    A("; ---- phase C ----")
    for T in range(7):
        A(f"v_accvgpr_write_b32 a{CS_A+4*T}, v{CF1+4*T}\nv_accvgpr_write_b32 a{CS_A+4*T+1}, v{CF1+4*T+1}")
        A(f"v_accvgpr_write_b32 a{CS_A+4*T+2}, 0\nv_accvgpr_write_b32 a{CS_A+4*T+3}, 0")
    A(f"""
    s_lshl_b32 s64, {sR}, 3
    s_lshl_b32 s55, {sWAVE}, 1
    s_add_u32 s64, s64, s55
    s_mul_i32 s60, s64, 20480
    s_add_u32 s60, s60, {HF}
    s_add_u32 s61, s60, 20480
    s_lshl_b32 s62, s64, 10
    s_add_u32 s62, s62, {STT}
    v_and_b32 v5, 15, v1
    v_lshrrev_b32 v12, 4, v1
    v_lshlrev_b32 v5, 3, v5
    v_lshl_add_u32 v5, v12, 8, v5
    s_mul_i32 s66, s64, 55296
    s_lshr_b32 s55, {sC}, 1
    s_mul_i32 s55, s55, 7168
    s_add_u32 s66, s66, s55
    s_add_u32 s66, s66, {H1F}
    s_add_u32 s67, s66, 55296
    s_add_u32 s68, s66, 4096
    s_add_u32 s69, s67, 4096
    """)
    signal_group(A, 3, sR, sC, "h")
    stamp(A, cfg, 30)
    for _ in range(10): A(W1G, "w1b")
    A.bg += w2_groups(40, 49)
    A.sprinkle(cfg.w2_h3)
    A.wait("w1b")
    stamp(A, cfg, 31)
    wait_group(A, 3, sR)
    stamp(A, cfg, 32)
    def hl(s):
        for i in range(2):
            A(f"buffer_load_dwordx4 {vr(HFR+8*s+4*i,4)}, v2, {SWS}, s{60+i} offen offset:{(s%4)*1024}{SC}", f"h{s}")
        if s % 4 == 3 and s < 19: A("s_add_u32 s60, s60, 4096\ns_add_u32 s61, s61, 4096")
    W = cfg.aheadC
    hl(0)
    for i in range(2):
        for j in range(2):
            A(f"buffer_load_dwordx2 {vr(ST+4*i+2*j,2)}, v5, {SWS}, s62 offen offset:{i*1024+j*128}{SC}", "st")
    for s in range(1, W): hl(s)
    seq = [(s, T) for s in range(20) for T in range(7)]
    NB = 8
    def rd(k):
        s, T = seq[k]
        b, o = lds_base(T * 20480 + s * 1024)
        A(f"ds_read_b128 {ar(WBA+4*(k%NB),4)}, {b} offset:{o}")
    for k in range(6): rd(k)
    side = [f"v_add_f32 v{ST}, v{ST}, v{ST+2}", f"v_add_f32 v{ST+4}, v{ST+4}, v{ST+6}"]
    pairs = [(ST, ST + 2), (ST + 4, ST + 6)]
    for sw in ("v_permlane16_swap_b32", "v_permlane32_swap_b32"):
        side += [f"v_mov_b32 v{t}, v{v}" for v, t in pairs] + [f"{sw} v{v}, v{t}" for v, t in pairs] + [f"v_add_f32 v{v}, v{v}, v{t}" for v, t in pairs]
    side += ["v_cmp_gt_u32 vcc, 16, v1"]
    for i in range(2):
        v, F = ST + 4 * i, 232 + 4 * i
        side += [f"v_mul_f32 v{v}, 0xbacccccd, v{v}", f"v_cndmask_b32 v{v}, 0, v{v}, vcc", f"v_cvt_pk_bf16_f32 v{F}, v{v}, v{v}", f"v_lshlrev_b32 v{v+1}, 16, v{F}",
                 f"v_sub_f32 v{v+1}, v{v}, v{v+1}", f"v_cvt_pk_bf16_f32 v{F+1}, v{v+1}, 0", f"v_mov_b32 v{F+2}, 0", f"v_mov_b32 v{F+3}, 0"]
    for k, (s, T) in enumerate(seq):
        if T == 0: A.wait(f"h{s}")
        if k == 21: A.wait("st")
        if k % 2 == 0: A(f"s_waitcnt lgkmcnt({max(0, min(4, len(seq)-2-k))})")
        for i in range(2):
            acc = vr(ACC + 4 * (7 * i + T), 4)
            A(f"v_mfma_f32_16x16x32_bf16 {acc}, {ar(WBA+4*(k%NB),4)}, {vr(HFR+8*s+4*i,4)}, {'0' if s==0 else acc}")
            if i == 0 and k + 6 < len(seq): rd(k + 6)
        if k >= 21 and k % 2 == 1 and side: A(side.pop(0))
        if T == 1 and s + W < 20: hl(s + W)
        if T == 4 and s >= cfg.c_bg_from: A.sprinkle(cfg.c_bg_n)
    assert not side
    for i in range(2):
        for T in range(7):
            acc = vr(ACC + 4 * (7 * i + T), 4)
            A(f"v_mfma_f32_16x16x32_bf16 {acc}, {ar(CS_A+4*T,4)}, {vr(232+4*i,4)}, {acc}")
    stamp(A, cfg, 33)
    for i in range(2):
        for T in range(7):
            for h in range(2):
                a = ACC + 4 * (7 * i + T) + 2 * h
                A(f"v_cvt_pk_bf16_f32 v{64+16*i+2*T+h}, v{a}, v{a+1}")
        for T in range(7):
            for h in range(2):
                A(f"v_pk_max_i16 v{64+16*i+2*T+h}, v{64+16*i+2*T+h}, 0")
        P = 64 + 16 * i
        l15, le = A.label("c15"), A.label("ce")
        A.cond += 1
        A(f"s_bitcmp1_b32 {sC}, 0\ns_cbranch_scc1 {l15}")
        for k in range(3): A(f"buffer_store_dwordx4 {vr(P+4*k,4)}, v2, {SWS}, s{66+i} offen offset:{k*1024}{SC}", "h1")
        A(f"buffer_store_dwordx2 {vr(P+12,2)}, v2, {SWS}, s{66+i} offen offset:3072{SC}", "h1")
        A(f"s_branch {le}\n{l15}:")
        A(f"buffer_store_dwordx2 {vr(P,2)}, v2, {SWS}, s{66+i} offen offset:{3072+8}{SC}", "h1")
        A(f"buffer_store_dwordx4 {vr(P+2,4)}, v2, {SWS}, s{68+i} offen{SC}", "h1")
        A(f"s_cmp_eq_u32 {sC}, 15\ns_cbranch_scc1 {le}")
        A(f"buffer_store_dwordx4 {vr(P+6,4)}, v2, {SWS}, s{68+i} offen offset:1024{SC}", "h1")
        A(f"buffer_store_dwordx4 {vr(P+10,4)}, v2, {SWS}, s{68+i} offen offset:2048{SC}", "h1")
        A(f"{le}:")
        A.cond -= 1
    stamp(A, cfg, 34)

def phase_D(A, cfg):
    ACC, HB = 8, 88
    A("; ---- phase D ----")
    lno, lo2, lw = A.label("noopt"), A.label("opt2"), A.label("optw")
    A(f"""
    s_lshr_b32 s62, {sC}, 1
    s_and_b32 s63, {sC}, 1
    s_lshl_b32 s64, {sR}, 3
    s_lshl_b32 s55, s63, 2
    s_add_u32 s64, s64, s55
    """)
    for i in range(4):
        A(f"""
        s_add_u32 s55, {sWAVE}, {i}
        s_and_b32 s55, s55, 3
        s_add_u32 s56, s55, s64
        s_mul_i32 s{66+i}, s56, 55296
        s_add_u32 s{66+i}, s{66+i}, s52
        s_add_u32 s{66+i}, s{66+i}, {H1F}
        s_mul_i32 s55, s55, 15360
        s_add_u32 s55, s55, {max(i-1,0)*5120}
        v_add_u32 v{240+i}, s55, v2
        """)
    A(f"""
    s_add_u32 s55, s64, {sWAVE}
    s_lshl_b32 s61, s55, 10
    s_add_u32 s61, s61, {STT}
    s_mul_i32 s60, s55, 20480
    s_mul_i32 s55, s62, 160
    s_add_u32 s60, s60, s55
    """)
    signal_group(A, 4, sR, sC, "h1")
    stamp(A, cfg, 40)
    for j in range(2):
        A(f"buffer_load_dwordx2 {vr(200+2*j,2)}, v5, {SWS}, s61 offen offset:{j*128}{SC}", "st")
    A.bg += w2_groups(49, 65)
    A.sprinkle(len(A.bg))
    A.cond += 1
    A(f"s_cmp_ge_u32 {sWAVE}, 2\ns_cbranch_scc1 {lw}")
    for t, tag in w2_groups(65, 70): A(t, tag)
    A(f"{lw}:")
    A.cond -= 1
    A.wait("st")
    A("v_add_f32 v200, v200, v202\nv_add_f32 v201, v201, v203")
    allreduce_16_32(A, [(200, 202), (201, 203)])
    stats_finish(A, 200, 201, 202)
    A("v_mov_b32 v5, v200")
    stamp(A, cfg, 41)
    wait_group(A, 4, sR)
    stamp(A, cfg, 42)
    def hload(st, i, slot):
        pre = f"s_add_u32 s55, s{66+i}, {(st//4)*4096}\n" if st >= 4 else ""
        A(pre + f"buffer_load_dwordx4 {vr(HB+4*slot,4)}, v2, {SWS}, {'s55' if st >= 4 else 's%d' % (66+i)} offen offset:{(st%4)*1024}{SC}", f"g{st}_{i}")
    def mm(st, i, slot, first=False, extra=None):
        for T in range(5):
            acc = vr(ACC + 4 * (5 * i + T), 4)
            A(f"v_mfma_f32_16x16x32_bf16 {acc}, {w2reg(st,T)}, {vr(HB+4*slot,4)}, {'0' if first else acc}")
            if extra: extra(T)
    HOLD = cfg.holdD
    order = []
    for st in range(13):
        order += [(st, i) for i in ((0, 1, 2, 3) if st < 13 - HOLD else (1, 2, 3))]
    n_opt = len(order)
    order += [(st, 0) for st in range(13 - HOLD, 13)]
    NS = 28
    W = cfg.aheadD
    for n in range(W): hload(*order[n], n % NS)
    wr = [(i, T) for i in (1, 2, 3) for T in range(5)]
    cnt = [0]
    addr = []
    addr += ["v_and_b32 v6, 15, v1", "v_lshrrev_b32 v7, 4, v1", "v_mul_u32_u24 v6, 176, v6", "v_lshl_add_u32 v6, v7, 3, v6",
             f"s_mul_i32 s56, {sWAVE}, 3072", "s_add_u32 s56, s56, 65536", "v_add_u32 v6, s56, v6"]
    for n, (st, i) in enumerate(order):
        if n == max(0, n_opt - W):
            A.cond += 1
            A(f"s_cmp_ge_u32 {sWAVE}, 2\ns_cbranch_scc1 {lno}")
            for ii in range(4): hload(13, ii, 28 + ii)
            A(f"{lno}:")
            A.cond -= 1
        if n == n_opt:
            A.cond += 1
            A(f"s_cmp_ge_u32 {sWAVE}, 2\ns_cbranch_scc1 {lo2}")
            A.wait("g13_3")
            for ii in (1, 2, 3, 0): mm(13, ii, 28 + ii)
            A(f"{lo2}:")
            A.cond -= 1
        A.wait(f"g{st}_{i}")
        def extra(T):
            if T == 1 and n + W < len(order): hload(*order[n + W], (n + W) % NS)
            if T == 3 and addr and n >= 4: A(addr.pop(0))
            if n >= n_opt:
                cnt[0] += 1
                if cnt[0] >= 3 and cnt[0] % cfg.wr_everyD == 0 and wr:
                    wi, wT = wr.pop(0)
                    A(f"ds_write_b128 v{240+wi}, {vr(ACC+4*(5*wi+wT),4)} offset:{wT*1024}")
        mm(st, i, n % NS, st == 0, extra)
    for wi, wT in wr: A(f"ds_write_b128 v{240+wi}, {vr(ACC+4*(5*wi+wT),4)} offset:{wT*1024}")
    stamp(A, cfg, 43)
    for it in range(3):
        A(f"""
        v_add_u32 v150, {it*64}, v1
        v_mul_u32_u24 v151, 6554, v150
        v_lshrrev_b32 v151, 16, v151
        v_mul_u32_u24 v152, 10, v151
        v_sub_u32 v152, v150, v152
        v_mul_u32_u24 v{154+it}, 176, v151
        v_lshl_add_u32 v{154+it}, v152, 4, v{154+it}
        v_add_u32 v{154+it}, s56, v{154+it}
        v_mul_u32_u24 v{158+it}, 1280, v151
        v_lshl_add_u32 v{158+it}, v152, 4, v{158+it}
        """)
    for i in range(10):
        A(f"v_lshlrev_b32 v{164+2*i}, 16, v{HK+i}\nv_and_b32 v{165+2*i}, 0xffff0000, v{HK+i}")
    A("v_mov_b32 v162, v5\ns_waitcnt lgkmcnt(0)\ns_barrier")
    for k in range(15): A(f"ds_read_b128 {vr(88+4*k,4)}, v240 offset:{k*1024}")
    for k in range(15):
        T = k % 5
        A(f"s_waitcnt lgkmcnt({14-k if k < 10 else 4})" if k <= 10 else f"s_waitcnt lgkmcnt(4)")
        A(f"v_pk_add_f32 {vr(ACC+4*T,2)}, {vr(ACC+4*T,2)}, {vr(88+4*k,2)}")
        A(f"v_pk_add_f32 {vr(ACC+4*T+2,2)}, {vr(ACC+4*T+2,2)}, {vr(90+4*k,2)}")
        if k >= 10:
            A(f"v_pk_fma_f32 {vr(ACC+4*T,2)}, {vr(ACC+4*T,2)}, v[162:163], {vr(164+4*T,2)} op_sel_hi:[1,0,1]")
            A(f"v_pk_fma_f32 {vr(ACC+4*T+2,2)}, {vr(ACC+4*T+2,2)}, v[162:163], {vr(166+4*T,2)} op_sel_hi:[1,0,1]")
            A(f"v_cvt_pk_bf16_f32 v{40+2*T}, v{ACC+4*T}, v{ACC+4*T+1}\nv_cvt_pk_bf16_f32 v{41+2*T}, v{ACC+4*T+2}, v{ACC+4*T+3}")
            A(f"ds_write_b64 v6, {vr(40+2*T,2)} offset:{T*32}")
    A("s_waitcnt lgkmcnt(0)")
    for it in range(3): A(f"ds_read_b128 {vr(52+4*it,4)}, v{154+it}")
    for it in range(3):
        A(f"s_waitcnt lgkmcnt({2-it})")
        if it == 2: A("s_mov_b64 exec, 0xffffffff")
        A(f"buffer_store_dwordx4 {vr(52+4*it,4)}, v{158+it}, {SOUT}, s60 offen")
    A("s_mov_b64 exec, -1")

def build(cfg):
    hdr = open("cdna_kernels/" + NAME + ".s.ref").read().split("; Override")[0]
    name = NAME + "_kernel"
    A = Asm()
    ex = "L_exit"
    A(f".text\n.globl {name}\n.p2align 8\n.type {name},@function\n{name}:")
    if cfg.stamps: A(f"v_mov_b32 v{STV}, 0\nv_mov_b32 v{STV+1}, 0")
    stamp(A, cfg, 0)
    prologue(A, cfg, ex)
    phase_P(A, cfg)
    phase_A(A, cfg)
    phase_B(A, cfg)
    phase_C(A, cfg)
    phase_D(A, cfg)
    stamp(A, cfg, 62)
    stamp_flush(A, cfg)
    A(f"{ex}:\ns_endpgm")
    softmax_routine(A, NSMX)
    a_addresses(A)
    A(f"""
    .section .rodata,"a"
    .p2align 6
    .amdhsa_kernel {name}
    .amdhsa_next_free_vgpr 512
    .amdhsa_next_free_sgpr 100
    .amdhsa_accum_offset 256
    .amdhsa_group_segment_fixed_size 0
    .amdhsa_kernarg_size 80
    .amdhsa_user_sgpr_count 2
    .amdhsa_user_sgpr_kernarg_segment_ptr 1
    .amdhsa_system_sgpr_workgroup_id_x 1
    .end_amdhsa_kernel
    """)
    return hdr + "; @launch grid=(256,1,1) block=(256,1,1) lds=163840\n" + '.amdgcn_target "amdgcn-amd-amdhsa--gfx950"\n' + A.render()

def default_cfg():
    c = Cfg()
    c.aheadA = 4; c.k_wo = 9; c.p2every = 1; c.p2sig = 12; c.w2_h2 = 8; c.w2_b = 6; c.w2_h3 = 12; c.aheadB = 12; c.aheadC = 5; c.c_bg_from = 8; c.c_bg_n = 1
    c.aheadD = 12; c.holdD = 8; c.wr_everyD = 2
    return c

if __name__ == "__main__":
    cfg = default_cfg()
    for a in sys.argv[2:]:
        if "=" in a:
            k, v = a.split("=")
            setattr(cfg, k, int(v) if v.lstrip("-").isdigit() else v)
    cfg.stamps = "stamps" in sys.argv
    dst = sys.argv[1] if len(sys.argv) > 1 else "cdna_kernels/" + NAME + ".s"
    open(dst, "w").write(build(cfg))
    print("wrote", dst)
```

```python
import re

REG_RE = re.compile(r'\b([vas])(\d+)\b|\b([vas])\[(\d+):(\d+)\]|\b(vcc|exec|m0|scc)\b')

def regs_of(tok):
    out = set()
    for m in REG_RE.finditer(tok):
        if m.group(1):
            out.add((m.group(1), int(m.group(2))))
        elif m.group(3):
            for i in range(int(m.group(4)), int(m.group(5)) + 1):
                out.add((m.group(3), i))
        else:
            out.add((m.group(6), 0))
    return out

TRANS = ("v_exp_f32", "v_log_f32", "v_rcp_f32", "v_rsq_f32", "v_sqrt_f32", "v_sin_f32", "v_cos_f32")

class Ins:
    __slots__ = ("text", "op", "rd", "wr", "kind", "passes", "srcc", "srcab", "dst", "wide_store", "data", "lds_dma", "dpp")
    def __init__(self, text):
        self.text = text
        t = text.split(";")[0].strip()
        parts = t.split(None, 1)
        self.op = op = parts[0]
        rest = parts[1] if len(parts) > 1 else ""
        ops = [o.strip() for o in rest.split(",")] if rest else []
        self.rd = set(); self.wr = set(); self.kind = "other"; self.passes = 0
        self.srcc = set(); self.srcab = set(); self.dst = set(); self.wide_store = False; self.data = set()
        self.lds_dma = False; self.dpp = ("row_" in rest or "quad_perm" in rest or "_dpp" in op)
        R = regs_of
        if op.startswith("v_mfma"):
            self.kind = "mfma"
            self.passes = 8 if "32x32x16" in op else 4
            self.dst = R(ops[0]); self.wr = set(self.dst)
            self.srcab = R(ops[1]) | R(ops[2]); self.srcc = R(ops[3])
            self.rd = self.srcab | self.srcc
        elif op.startswith("v_"):
            self.kind = "valu"
            if op.startswith("v_cmp"):
                self.wr = R(ops[0]); self.rd = set().union(*[R(o) for o in ops[1:]])
            elif op.startswith("v_permlane") and "swap" in op:
                self.wr = R(ops[0]) | R(ops[1]); self.rd = set(self.wr)
            elif op.startswith(("v_add_co", "v_sub_co", "v_addc_co", "v_subb_co")):
                self.wr = R(ops[0]) | R(ops[1]); self.rd = set().union(*[R(o) for o in ops[2:]])
            else:
                self.wr = R(ops[0]); self.rd = set().union(*[R(o) for o in ops[1:]]) if len(ops) > 1 else set()
                if op.startswith(("v_fmac", "v_dot2c", "v_writelane")) or self.dpp:
                    self.rd |= self.wr
                if op.startswith("v_cndmask") and len(ops) == 3:
                    self.rd.add(("vcc", 0))
        elif op.startswith(("buffer_", "global_")):
            self.kind = "vmem"
            if op in ("buffer_wbl2", "buffer_inv"):
                pass
            elif "store" in op or "atomic" in op:
                if op.startswith("buffer_"):
                    self.data = R(ops[0])
                else:
                    self.data = R(ops[1])
                self.rd = set().union(*[R(o) for o in ops])
                self.wide_store = ("x3" in op or "x4" in op)
            elif re.search(r'\blds\b', rest):
                self.lds_dma = True
                self.rd = set().union(*[R(o) for o in ops]) | {("m0", 0)}
            else:
                self.wr = R(ops[0]); self.rd = set().union(*[R(o) for o in ops[1:]])
        elif op.startswith("ds_"):
            self.kind = "ds"
            if op.startswith(("ds_write", "ds_add")):
                self.rd = set().union(*[R(o) for o in ops])
            else:
                self.wr = R(ops[0]); self.rd = set().union(*[R(o) for o in ops[1:]])
                if "d16" in op:
                    self.rd |= self.wr
        elif op.startswith("s_"):
            self.kind = "salu"
            if op.startswith(("s_cmp", "s_cbranch", "s_branch", "s_waitcnt", "s_barrier", "s_nop", "s_sleep", "s_endpgm", "s_setprio", "s_setpc")):
                self.rd = set().union(*[R(o) for o in ops]) if ops else set()
            else:
                self.wr = R(ops[0]) if ops else set()
                self.rd = set().union(*[R(o) for o in ops[1:]]) if len(ops) > 1 else set()
    def states(self):
        if self.op == "s_nop":
            return int(self.text.split(";")[0].split()[1], 0) + 1
        return 1

def vec(s):
    return {x for x in s if x[0] in "va"}
def sca(s):
    return {x for x in s if x[0] == "s" or x[0] == "vcc"}

def need(p, c):
    n = 0
    if p.kind == "valu":
        w = vec(p.wr)
        if c.kind == "mfma" and (w & c.rd): n = max(n, 2)
        if c.kind == "valu":
            if c.op.startswith("v_permlane") and (w & c.rd): n = max(n, 2)
            if c.dpp and (w & c.rd): n = max(n, 2)
            if c.op.startswith(("v_readfirstlane", "v_readlane")) and (w & c.rd): n = max(n, 1)
        if p.op in TRANS and (w & c.rd) and c.op not in TRANS: n = max(n, 1)
        if p.op in TRANS and (w & c.rd): n = max(n, 1)
        if p.op.startswith("v_dot2"):
            if (w & (c.rd | c.wr)):
                if c.op == p.op and c.kind == "valu":
                    toks = [o.strip() for o in c.text.split(";")[0].split(None, 1)[1].split(",")]
                    ab = regs_of(toks[1]) | regs_of(toks[2])
                    if w & ab: n = max(n, 3)
                else:
                    n = max(n, 3)
        sw = sca(p.wr)
        if sw:
            if c.kind in ("valu", "mfma") and (sw & c.rd): n = max(n, 4 if c.op.startswith(("v_readlane", "v_writelane")) else 2)
            if c.kind == "vmem" and (sw & c.rd): n = max(n, 5)
            if c.kind == "salu" and (sw & c.rd): n = max(n, 1)
            if c.op.startswith("s_cbranch_vcc") and ("vcc", 0) in sw: n = max(n, 1)
    if p.kind == "mfma":
        far = {4: 8, 8: 12}[p.passes]
        if c.kind == "mfma":
            if p.dst & c.srcab: n = max(n, far)
            if p.dst & c.srcc:
                if not (c.srcc == p.dst and c.passes == p.passes): n = max(n, {4: 6, 8: 10}[p.passes])
            if (p.dst & c.dst) and not (c.srcc == p.dst and c.passes == p.passes): n = max(n, {4: 6, 8: 10}[p.passes])
        elif c.kind in ("valu", "vmem", "ds"):
            if p.dst & (c.rd | c.wr): n = max(n, far)
            if c.kind == "valu" and (p.srcc & c.wr): n = max(n, {4: 3, 8: 7}[p.passes])
    if p.kind == "salu" and ("m0", 0) in p.wr and (c.lds_dma): n = max(n, 1)
    if p.kind == "vmem" and p.wide_store and (p.data & c.wr): n = max(n, 2)
    return n

class Asm:
    def __init__(self):
        self.items = []
        self.uid = 0
        self.vm = []
        self.tag = None
        self.cond = 0
        self.bg = []
        self.pace_iv = 0
        self.pace_acc = 0
        self.pace_max = 0
        self._in_bg = False
    def __call__(self, text, tag=None):
        for line in text.split("\n"):
            line = line.strip()
            if not line: continue
            if line.startswith(";") or line.startswith(".") or line.endswith(":"):
                self.items.append(line)
            else:
                ins = Ins(line)
                self.items.append(ins)
                if ins.kind == "vmem" and ins.op not in ("buffer_wbl2", "buffer_inv"):
                    self.vm.append((tag or self.tag, self.cond == 0))
                if ins.op == "s_waitcnt" and "vmcnt(0)" in line and self.cond == 0:
                    self.vm = []
                if self.pace_iv and not self._in_bg and self.cond == 0:
                    if ins.kind == "mfma": self._mf = ins.passes * 4; self.pace_acc += self._mf; self._cover = self._mf - 8
                    else:
                        c = 9 if ins.op in TRANS else 5
                        cov = min(getattr(self, "_cover", 0), c); self._cover = getattr(self, "_cover", 0) - cov
                        self.pace_acc += c - cov
                    if self.pace_acc >= self.pace_iv and self.bg and self.pace_max > 0 and not ins.op.startswith(("s_cmp", "s_bitcmp")):
                        self.pace_acc -= self.pace_iv; self.pace_max -= 1
                        self.sprinkle(1)
    def vm_after(self, tag):
        idx = [i for i, (t, c) in enumerate(self.vm) if t == tag]
        if not idx: return None
        return sum(1 for (t, c) in self.vm[idx[-1] + 1:] if c)
    def wait(self, tag, extra=""):
        n = self.vm_after(tag)
        if n is None or n > 63:
            if extra: self(f"s_waitcnt {extra}")
            return
        self(f"s_waitcnt vmcnt({n}) {extra}".strip())
    def pace(self, iv, nmax=999):
        self.pace_iv = iv; self.pace_acc = iv if iv else 0; self.pace_max = nmax; self._cover = 0
    def sprinkle(self, n=1):
        old = self._in_bg; self._in_bg = True
        for _ in range(n):
            if self.bg:
                text, tag = self.bg.pop(0)
                self(text, tag)
        self._in_bg = old
    def label(self, base):
        self.uid += 1
        return f"L_{base}_{self.uid}"
    def render(self):
        out = []
        hist = []
        nins = 0
        for it in self.items:
            if isinstance(it, str):
                out.append(it if (it.endswith(":") or it.startswith(".")) else "  " + it)
                continue
            dist = 0; req = 0
            for p in reversed(hist):
                r = need(p, it) - dist
                if r > req: req = r
                dist += p.states()
                if dist >= 20: break
            while req > 0:
                k = min(req, 16)
                nop = Ins(f"s_nop {k-1}")
                hist.append(nop); out.append(f"  s_nop {k-1}"); req -= k; nins += 1
            hist.append(it); out.append("  " + it.text); nins += 1
            if len(hist) > 40: hist = hist[-40:]
        return "\n".join(out) + "\n"
```

```python
import sys
sys.path.insert(0, "dev")
from asmlib import Asm

NAME = "sequential_preLN__linear_kernel_hedgehog__dense_activation_relu__prompt"

WQ  = 0
WO  = WQ + 2621440
W2  = WO + 819200
KVP = W2 + 2211840
OF  = KVP + 256 * 6784
HF  = OF + 2621440
H1F = HF + 2621440
W1  = H1F + 7077888
STT = W1 + 108 * 20480
CSQ = STT + 131072
CS1 = CSQ + 131072
CSJ = CS1 + 20 * 6912
FLG = (CSJ + 54 * 2560 + 4095) // 4096 * 4096
EPOCH = FLG + 7 * 8192
STAMP = 64 << 20
DBGA = 128 << 20
WS_BYTES = 268435456

SWS, SX, SOUT, SSRC, SW1 = "s[28:31]", "s[32:35]", "s[36:39]", "s[40:43]", "s[44:47]"
sWAVE, sR, sC, sNONCE, sRA, sCA = "s48", "s49", "s50", "s51", "s82", "s83"
sLOCAL = "s85"
SC = " sc1"
SPIN = 0x40000

class Cfg:
    stamps = False
    mapA = "8x4"
    mapB = "2x16"

def vr(b, n): return f"v[{b}:{b+n-1}]"
def ar(b, n): return f"a[{b}:{b+n-1}]"

def emit_map(A, kind, r, c):
    if kind == "2x16":
        A(f"s_lshl_b32 {r}, s52, 1\ns_and_b32 s54, s53, 1\ns_add_u32 {r}, {r}, s54\ns_lshr_b32 {c}, s53, 1")
    elif kind == "4x8":
        A(f"s_lshr_b32 {r}, s52, 1\ns_lshl_b32 {r}, {r}, 2\ns_and_b32 s54, s53, 3\ns_add_u32 {r}, {r}, s54")
        A(f"s_and_b32 {c}, s52, 1\ns_lshl_b32 {c}, {c}, 3\ns_lshr_b32 s54, s53, 2\ns_add_u32 {c}, {c}, s54")
    elif kind == "8x4":
        A(f"s_lshr_b32 {r}, s52, 2\ns_lshl_b32 {r}, {r}, 3\ns_and_b32 s54, s53, 7\ns_add_u32 {r}, {r}, s54")
        A(f"s_and_b32 {c}, s52, 3\ns_lshl_b32 {c}, {c}, 2\ns_lshr_b32 s54, s53, 3\ns_add_u32 {c}, {c}, s54")
    else:
        raise ValueError(kind)

def prologue(A, cfg, exit_label):
    A(f"""
    s_cmp_ge_u32 s2, 256
    s_cbranch_scc1 {exit_label}
    s_load_dwordx16 s[8:23], s[0:1], 0
    s_load_dwordx4 s[24:27], s[0:1], 64
    v_and_b32 v1, 63, v0
    v_lshrrev_b32 v2, 6, v0
    s_and_b32 s52, s2, 7
    s_lshr_b32 s53, s2, 3
    v_readfirstlane_b32 {sWAVE}, v2
    """)
    emit_map(A, cfg.mapB, sR, sC)
    emit_map(A, cfg.mapA, sRA, sCA)
    A(f"""
    v_lshlrev_b32 v2, 4, v1
    s_mov_b32 s30, {WS_BYTES}
    s_mov_b32 s31, 0x20000
    s_mov_b32 s34, 2621440
    s_mov_b32 s35, 0x20000
    s_mov_b32 s38, 2621440
    s_mov_b32 s39, 0x20000
    s_mov_b32 s43, 0x20000
    s_mov_b32 s46, {108*20480}
    s_mov_b32 s47, 0x20000
    s_mov_b32 s84, 0x3fb8aa3b
    s_mov_b32 s85, 0
    """)

def prologue2(A):
    A(f"""
    s_waitcnt lgkmcnt(0)
    s_mov_b32 s28, s26
    s_mov_b32 s29, s27
    s_mov_b32 s32, s8
    s_mov_b32 s33, s9
    s_mov_b32 s36, s22
    s_mov_b32 s37, s23
    s_add_u32 s44, s26, {W1}
    s_addc_u32 s45, s27, 0
    s_mov_b32 s56, {EPOCH}
    buffer_load_dword v7, off, {SWS}, s56 sc1
    """)

STV = 244
def stamp(A, cfg, k):
    if cfg.stamps:
        A(f"s_memrealtime s[94:95]\ns_memtime s[96:97]\ns_waitcnt lgkmcnt(0)\nv_writelane_b32 v{STV}, s94, {k}\nv_writelane_b32 v{STV+1}, s96, {k}")

def stamp_flush(A, cfg):
    if cfg.stamps:
        A(f"""
        s_waitcnt vmcnt(0)
        s_memrealtime s[94:95]
        s_waitcnt lgkmcnt(0)
        v_writelane_b32 v{STV}, s94, 63
        s_lshl_b32 s90, s2, 2
        s_add_u32 s90, s90, {sWAVE}
        s_lshl_b32 s90, s90, 8
        s_add_u32 s90, s90, {STAMP}
        v_lshlrev_b32 v5, 2, v1
        buffer_store_dword v{STV}, v5, {SWS}, s90 offen
        s_add_u32 s90, s90, {8<<20}
        buffer_store_dword v{STV+1}, v5, {SWS}, s90 offen
        """)
    if cfg.stamps and getattr(cfg, "dbgout", 0):
        l = A.label("dbo")
        sel = [1, 10, 11, 5, 6, 7, 12, 13, 17, 18, 21, 32, 33, 42, 43, 63]
        A(f"s_cmp_lg_u32 s2, {cfg.dbgout}\ns_cbranch_scc1 {l}\ns_cmp_lg_u32 {sWAVE}, 0\ns_cbranch_scc1 {l}")
        A(f"v_readlane_b32 s90, v{STV}, 0\nv_mov_b32 v8, 0")
        for i, k in enumerate(sel):
            A(f"v_readlane_b32 s91, v{STV}, {k}\ns_sub_u32 s91, s91, s90\nv_writelane_b32 v8, s91, {i}")
        A(f"s_mov_b64 exec, 0xffff\nglobal_store_dword v5, v8, s[24:25]\n{l}:")

def tag_ready(A):
    A(f"v_readfirstlane_b32 {sNONCE}, v7\ns_add_u32 {sNONCE}, {sNONCE}, 16\ns_and_b32 {sNONCE}, {sNONCE}, -16")

def epoch_advance(A):
    l = A.label("ep")
    A.cond += 1
    A(f"""
    s_or_b32 s55, s2, {sWAVE}
    s_cmp_lg_u32 s55, 0
    s_cbranch_scc1 {l}
    v_mov_b32 v6, 0
    v_mov_b32 v7, {sNONCE}
    s_mov_b32 s58, {EPOCH}
    s_mov_b64 exec, 1
    buffer_store_dword v7, v6, {SWS}, s58 offen sc1
    s_mov_b64 exec, -1
    {l}:
    """)
    A.cond -= 1

def either(A, lines, tag=None):
    la, lb = A.label("far"), A.label("sent")
    A.cond += 1
    A(f"s_cmp_eq_u32 {sLOCAL}, 0\ns_cbranch_scc1 {la}")
    lines(lambda t: A(t.replace("@", ""), tag))
    A(f"s_branch {lb}\n{la}:")
    lines(lambda t: A(t.replace("@", " sc1"), tag))
    A(f"{lb}:")
    A.cond -= 1

def flag_store(A, val=None, local=False):
    A(f"""
    v_mov_b32 v6, s59
    v_mov_b32 v7, {val or sNONCE}
    s_mov_b64 exec, 1
    """)
    if local: either(A, lambda E: E(f"buffer_store_dword v7, v6, {SWS}, s58 offen@"))
    else: A(f"buffer_store_dword v7, v6, {SWS}, s58 offen sc1")
    A("s_mov_b64 exec, -1")

def signal_global(A, hop, fetch_nonce=False):
    l = A.label("sig")
    A.cond += 1
    A(f"s_cmp_lg_u32 {sWAVE}, 0\ns_cbranch_scc1 {l}")
    A(f"s_getreg_b32 s57, hwreg(HW_REG_XCC_ID)\ns_and_b32 s57, s57, 15\ns_or_b32 s76, s57, {sNONCE}")
    A(f"""
    s_lshr_b32 s58, s2, 2
    s_lshl_b32 s58, s58, 7
    s_add_u32 s58, s58, {FLG + hop*8192}
    s_and_b32 s59, s2, 3
    s_lshl_b32 s59, s59, 2
    """)
    flag_store(A, "s76")
    A(f"{l}:")
    A.cond -= 1

def poll_global(A, hop, R):
    lp, ld = A.label("poll"), A.label("pd")
    A(f"""
    v_lshlrev_b32 v6, 7, v1
    s_mov_b32 s58, {FLG + hop*8192}
    s_mov_b32 s57, 0
    {lp}:
    buffer_load_dwordx4 {vr(R,4)}, v6, {SWS}, s58 offen sc1
    s_add_u32 s57, s57, 1
    s_waitcnt vmcnt(0)
    v_xor_b32 v{R}, {sNONCE}, v{R}
    v_xor_b32 v{R+1}, {sNONCE}, v{R+1}
    v_xor_b32 v{R+2}, {sNONCE}, v{R+2}
    v_xor_b32 v{R+3}, {sNONCE}, v{R+3}
    v_or3_b32 v{R}, v{R}, v{R+1}, v{R+2}
    v_or_b32 v{R}, v{R}, v{R+3}
    v_cmp_lt_u32 vcc, 15, v{R}
    s_cmp_ge_u32 s57, {SPIN}
    s_cbranch_scc1 {ld}
    s_cbranch_vccnz {lp}
    {ld}:
    """)

def wait_global(A, hop, R):
    l = A.label("wt")
    A.cond += 1
    A(f"s_cmp_lg_u32 {sWAVE}, 0\ns_cbranch_scc1 {l}")
    poll_global(A, hop, R)
    A(f"{l}:")
    A.cond -= 1
    A("s_barrier")

def signal_group(A, hop, g, m, tag, local=False):
    l = A.label("sig")
    A.wait(tag)
    A("s_barrier")
    A.cond += 1
    A(f"""
    s_cmp_lg_u32 {sWAVE}, 0
    s_cbranch_scc1 {l}
    s_lshl_b32 s58, {g}, 7
    s_add_u32 s58, s58, {FLG + hop*8192}
    s_lshl_b32 s59, {m}, 2
    """)
    flag_store(A, None, local)
    A(f"{l}:")
    A.cond -= 1

def wait_group(A, hop, g):
    l, lp, ld = A.label("wt"), A.label("poll"), A.label("pd")
    A.cond += 1
    A(f"""
    s_cmp_lg_u32 {sWAVE}, 0
    s_cbranch_scc1 {l}
    s_lshl_b32 s58, {g}, 7
    s_add_u32 s58, s58, {FLG + hop*8192}
    v_lshlrev_b32 v6, 2, v1
    s_mov_b64 exec, 0xffff
    s_mov_b32 s57, 0
    {lp}:
    buffer_load_dword v7, v6, {SWS}, s58 offen sc1
    s_add_u32 s57, s57, 1
    s_waitcnt vmcnt(0)
    v_cmp_ne_u32 vcc, {sNONCE}, v7
    s_cmp_ge_u32 s57, {SPIN}
    s_cbranch_scc1 {ld}
    s_cbranch_vccnz {lp}
    {ld}:
    s_mov_b64 exec, -1
    {l}:
    """)
    A.cond -= 1
    A("s_barrier")


def side_params(A, sj, d):
    A(f"""
    s_cmp_lt_u32 {sj}, 540
    s_cselect_b32 s40, s18, s20
    s_cselect_b32 s41, s19, s21
    s_mov_b32 s42, 2211840
    s_mov_b32 s60, 1280
    s_cselect_b32 s60, 3456, s60
    s_mov_b32 s{d+1}, 55296
    s_cselect_b32 s{d+1}, 20480, s{d+1}
    s_cselect_b32 s55, 0, 540
    s_mov_b32 s56, 1214
    s_cselect_b32 s56, 3277, s56
    s_cselect_b32 s57, 20, 54
    s_mov_b32 s{d}, {W2}
    s_cselect_b32 s{d}, {W1}, s{d}
    s_mov_b32 s{d+2}, {CSJ}
    s_cselect_b32 s{d+2}, {CS1}, s{d+2}
    s_sub_u32 s55, {sj}, s55
    s_mul_i32 s58, s55, s56
    s_lshr_b32 s58, s58, 16
    s_mul_i32 s59, s58, s57
    s_sub_u32 s59, s55, s59
    s_lshl_b32 s55, s60, 5
    s_mul_i32 s61, s59, s55
    s_lshl_b32 s55, s58, 7
    s_add_u32 s61, s61, s55
    s_lshl_b32 s55, s{d+1}, 2
    s_mul_i32 s55, s55, s58
    s_add_u32 s{d}, s{d}, s55
    s_lshl_b32 s55, s59, 10
    s_add_u32 s{d}, s{d}, s55
    s_lshl_b32 s55, s60, 1
    s_mul_i32 s55, s55, s59
    s_add_u32 s{d+2}, s{d+2}, s55
    s_lshl_b32 s55, s58, 8
    s_add_u32 s{d+2}, s{d+2}, s55
    """)

def dma_rows(A, n, lds_off):
    A(f"""
    s_add_u32 m0, s64, {lds_off}
    v_mad_u32_u24 v11, v3, s60, v4
    s_lshl_b32 s55, s60, 3
    """)
    for i in range(n):
        A(f"buffer_load_dwordx4 v11, {SSRC}, s61 offen lds")
        if i + 1 < n:
            A("s_add_u32 m0, m0, 1024\ns_add_u32 s61, s61, s55")

def side_process(A, lds_off, d, R):
    A(f"v_mad_u32_u24 v{R+16}, v12, s{d+1}, v13\nv_mov_b32 v{R+17}, 0\nv_mov_b32 v{R+18}, 0")
    for g in range(4):
        A(f"ds_read_b64_tr_b16 v[{R+4*g}:{R+1+4*g}], v5 offset:{lds_off + 4*g*128}")
        A(f"ds_read_b64_tr_b16 v[{R+2+4*g}:{R+3+4*g}], v5 offset:{lds_off + (16+4*g)*128}")
    for g in range(4):
        A(f"s_waitcnt lgkmcnt({6-2*g})")
        A(f"buffer_store_dwordx4 v[{R+4*g}:{R+3+4*g}], v{R+16}, {SWS}, s{d} offen offset:{g*256}{SC}")
        for j in range(4): A(f"v_dot2c_f32_bf16 v{R+17+j%2}, s79, v{R+4*g+j}")
    A(f"v_add_f32 v{R+17}, v{R+17}, v{R+18}")
    A(f"buffer_store_dword v{R+17}, v14, {SWS}, s{d+2} offen{SC}")

def allreduce_16_32(A, pairs):
    for sw in ("v_permlane16_swap_b32", "v_permlane32_swap_b32"):
        for v, t in pairs: A(f"v_mov_b32 v{t}, v{v}")
        for v, t in pairs: A(f"{sw} v{v}, v{t}")
        for v, t in pairs: A(f"v_add_f32 v{v}, v{v}, v{t}")

def stats_finish(A, vs, vq, vt):
    A(f"""
    v_mul_f32 v{vs}, 0x3acccccd, v{vs}
    v_mul_f32 v{vq}, 0x3acccccd, v{vq}
    v_fma_f32 v{vt}, -v{vs}, v{vs}, v{vq}
    v_max_f32 v{vt}, 0, v{vt}
    v_add_f32 v{vt}, 0x3727c5ac, v{vt}
    v_rsq_f32 v{vt}, v{vt}
    v_mul_f32 v{vq}, -v{vs}, v{vt}
    v_mov_b32 v{vs}, v{vt}
    """)


WM, WLf = 8, 20
ACK, ACV, ACL, ACQ = 32, 48, 64, 80
CSF = 96
U = 112
PP, PL = 124, 140
EP, EN = 156, 176
PH = 196
VV = 156
QL = 216
TM = 218
RSTD, LSC, MF = 230, 232, 236
aPKW, aTRA0, aTRA1, aTRB0, aTRB1, aKVS, aKVL, aKVF, aOST, aZ = range(246, 256)
aKVF2, aHW, aHR, aWM, aWL, aGRP = 234, 235, 240, 241, 242, 243
LOC_LDS = 87 * 1024
PKV_LDS = 88 * 1024
KVF_LDS = 150 * 1024
WPHI_LDS = 152 * 1024
XS_LDS = 40 * 1024
HOLE_LDS = 158 * 1024
XR, WO25, HK = 230, 240, 246
WA0, WA1 = 160, 208

def x_reads(A, rnd, half_off):
    for k in range(20):
        j, sp = k // 4, k % 4
        o = half_off + j * 4096
        A(f"ds_read_b128 {vr(124+4*(k%16),4)}, v{112+sp} offset:{o}")
        A(f"ds_read_b128 {ar(4*(20*rnd+k),4)}, v{112+sp} offset:{o}")
        if k % 4 == 3 and k >= 7:
            A("s_waitcnt lgkmcnt(8)")
            for kk in range(k - 7, k - 3): x_stats(A, 124 + 4 * (kk % 16))
    A("s_waitcnt lgkmcnt(0)")
    for kk in range(16, 20): x_stats(A, 124 + 4 * (kk % 16))

def x_stats(A, R):
    for j in range(4):
        A(f"v_dot2c_f32_bf16 v{120+2*(j%2)}, s79, v{R+j}")
        A(f"v_dot2c_f32_bf16 v{121+2*(j%2)}, v{R+j}, v{R+j}")

def split_hi_lo(A, src, hi, lo, t):
    A(f"""
    v_cvt_pk_bf16_f32 v{hi}, v{src}, 0
    v_lshlrev_b32 v{t}, 16, v{hi}
    v_sub_f32 v{t}, v{src}, v{t}
    v_cvt_pk_bf16_f32 v{lo}, v{t}, 0
    """)

def phase_P(A, cfg):
    lNOX, lWO, lSD, lX2, lPE, lF = (A.label(x) for x in ("noextra", "wo", "sided", "x2", "pe", "fl"))
    HALF = 20480
    A(f"""
    v_lshrrev_b32 v3, 3, v1
    v_and_b32 v4, 7, v1
    v_lshlrev_b32 v14, 2, v1
    s_mov_b32 s79, 0x3f803f80
    s_mul_i32 s64, {sWAVE}, 40960
    v_min_u32 v8, 4, v4
    v_lshlrev_b32 v8, 4, v8
    v_min_u32 v9, 5, v4
    v_lshrrev_b32 v10, 1, v9
    v_mul_u32_u24 v10, 1280, v10
    v_and_b32 v9, 1, v9
    v_lshl_add_u32 v10, v9, 5, v10
    v_add_u32 v10, 32, v10
    s_add_u32 s55, {sWAVE}, 1
    s_and_b32 s55, s55, 3
    s_mul_i32 s55, s55, 1280
    v_add_u32 v8, s55, v8
    s_cmp_eq_u32 {sWAVE}, 2
    s_cselect_b64 vcc, -1, 0
    v_cndmask_b32 v8, v8, v10, vcc
    v_mul_u32_u24 v10, 3840, v3
    v_add_u32 v8, v8, v10
    s_mul_i32 s61, {sRA}, {40*3840}
    s_mul_i32 s55, {sCA}, 80
    s_add_u32 s61, s61, s55
    s_mov_b32 m0, s64
    s_mov_b32 s42, 2457600
    v_lshrrev_b32 v10, 4, v1
    v_xor_b32 v15, v4, v10
    v_mul_u32_u24 v16, 1280, v3
    v_lshl_add_u32 v15, v15, 4, v16
    v_xor_b32 v16, 64, v15
    s_lshl_b32 s77, {sRA}, 2
    s_add_u32 s77, s77, {sWAVE}
    s_mul_i32 s77, s77, {32*1280}
    v_and_b32 v10, 1, v10
    v_lshlrev_b32 v10, 2, v10
    v_xor_b32 v4, v4, v10
    v_lshlrev_b32 v4, 4, v4
    s_lshl_b32 s65, s2, 2
    s_add_u32 s65, s65, {sWAVE}
    """)
    prologue2(A)
    A("s_mov_b32 s40, s10\ns_mov_b32 s41, s11")
    for i in range(5):
        A(f"buffer_load_dwordx4 v8, {SSRC}, s61 offen lds", "crit")
        if i < 4: A(f"s_add_u32 m0, m0, 1024\ns_add_u32 s61, s61, {8*3840}")
    side_params(A, "s65", 66)
    A.tag = "side"
    dma_rows(A, 4, 5120)
    A.tag = None
    def xround(rnd, off, tag):
        A(f"s_add_u32 m0, s64, {off}")
        for j in range(5):
            A(f"s_add_u32 s61, s77, {(5*rnd+j)*128}")
            for i in range(4):
                A(f"buffer_load_dwordx4 v{15 + i % 2}, {SX}, s61 offen lds", tag)
                A("s_add_u32 m0, m0, 1024")
                if i < 3: A(f"s_add_u32 s61, s61, {8*1280}")
            if rnd == 0 and j == 0: A("s_call_b64 s[80:81], L_addr")
    xround(0, HALF, "x0")
    stamp(A, cfg, 1)
    A(f"""
    v_bfe_u32 v17, v1, 2, 2
    v_lshrrev_b32 v18, 5, v1
    v_lshl_add_u32 v17, v18, 3, v17
    v_lshlrev_b32 v17, 7, v17
    v_add_u32 v17, s64, v17
    v_bfe_u32 v19, v1, 4, 1
    v_bfe_u32 v20, v1, 1, 1
    v_lshl_add_u32 v19, v19, 1, v20
    v_and_b32 v20, 1, v1
    v_mul_u32_u24 v21, 40, v20
    v_lshl_add_u32 v21, v19, 3, v21
    v_min_u32 v19, 2, v19
    v_mul_u32_u24 v22, 24, v20
    v_lshl_add_u32 v22, v19, 5, v22
    v_cndmask_b32 v21, v21, v22, vcc
    v_add_u32 v21, v17, v21
    v_and_b32 v19, 31, v1
    v_lshlrev_b32 v23, 2, v19
    v_lshlrev_b32 v19, 4, v19
    s_lshl_b32 s70, {sWAVE}, 10
    s_mov_b32 s71, 3072
    s_cmp_eq_u32 {sWAVE}, 3
    s_cselect_b32 s70, 122880, s70
    s_cselect_b32 s71, 1024, s71
    s_mul_i32 s55, {sCA}, 163840
    s_add_u32 s70, s70, s55
    s_lshl_b32 s69, {sCA}, 4
    s_add_u32 s69, s69, {sRA}
    s_lshl_b32 s69, s69, 2
    s_add_u32 s69, s69, {sWAVE}
    s_lshl_b32 s69, s69, 7
    s_add_u32 s69, s69, {CSQ}
    s_mul_i32 s55, {sRA}, 5
    v_add_u32 v18, s55, v18
    """)
    for i in range(3):
        A(f"""
        v_add_u32 v20, {2*i}, v18
        v_and_b32 v22, 1, v20
        v_lshl_add_u32 v22, v22, 9, v19
        v_lshrrev_b32 v20, 1, v20
        v_mad_u32_u24 v{24+i}, v20, s71, v22
        """)
    A(f"""
    v_lshrrev_b32 v12, 4, v1
    v_and_b32 v13, 15, v1
    v_and_b32 v10, 3, v1
    v_lshlrev_b32 v10, 3, v10
    v_lshl_add_u32 v10, v12, 5, v10
    v_bfe_u32 v11, v1, 3, 1
    v_lshlrev_b32 v11, 6, v11
    v_xor_b32 v10, v10, v11
    v_bfe_u32 v11, v1, 2, 2
    v_lshl_add_u32 v5, v11, 7, v10
    v_add_u32 v5, s64, v5
    v_lshlrev_b32 v13, 4, v13
    v_mov_b32 v56, 0
    v_mov_b32 v57, 0
    """)
    A.wait("crit")
    tag_ready(A)
    stamp(A, cfg, 10)
    for i in range(3):
        R = 32 + 4 * i
        A(f"ds_read_b64_tr_b16 v[{R}:{R+1}], v21 offset:{16*i*128}")
        A(f"ds_read_b64_tr_b16 v[{R+2}:{R+3}], v21 offset:{(16*i+4)*128}")
    for i in range(3):
        if i == 2: A("s_mov_b64 exec, 0xffffffff")
        A(f"s_waitcnt lgkmcnt({4 - 2*i})")
        A(f"buffer_store_dwordx4 v[{32+4*i}:{35+4*i}], v{24+i}, {SWS}, s70 offen{SC}", "cst")
    for i in (2, 0, 1):
        for j in range(4): A(f"v_dot2c_f32_bf16 v{56+j%2}, s79, v{32+4*i+j}")
        if i == 2: A("s_mov_b64 exec, -1")
    A("""
    v_add_f32 v56, v56, v57
    v_mov_b32 v58, v56
    v_permlane32_swap_b32 v56, v58
    v_add_f32 v56, v56, v58
    s_mov_b64 exec, 0xffffffff
    """)
    A(f"buffer_store_dword v56, v23, {SWS}, s69 offen{SC}", "cst")
    A("s_mov_b64 exec, -1")
    stamp(A, cfg, 2)
    A.wait("side")
    side_process(A, 5120, 66, 60)
    xround(1, 0, "x1")
    A.wait("cst")
    stamp(A, cfg, 11)
    A("s_barrier")
    A.cond += 1
    A(f"""
    s_cmp_lg_u32 {sWAVE}, 0
    s_cbranch_scc1 {lF}
    s_lshl_b32 s58, {sCA}, 7
    s_add_u32 s58, s58, {FLG}
    s_lshl_b32 s59, {sRA}, 2
    """)
    flag_store(A)
    A(f"{lF}:")
    A.cond -= 1
    stamp(A, cfg, 3)
    x_reads(A, 0, HALF)
    stamp(A, cfg, 4)
    A(f"""
    s_mov_b32 s40, s12
    s_mov_b32 s41, s13
    s_mov_b32 s42, 25600
    s_mul_i32 s61, {sCA}, 1600
    s_add_u32 m0, s64, {HALF + 10240}
    v_mov_b32 v32, 0
    v_mov_b32 v33, 0
    v_mov_b32 v34, 0
    v_mov_b32 v35, 0
    v_add_u32 v36, s64, v2
    """)
    A(f"buffer_load_dwordx4 v2, {SSRC}, s61 offen lds\nbuffer_load_dwordx4 v2, {SSRC}, s61 offen offset:1024 lds", "phi")
    A(f"ds_write_b128 v36, v[32:35] offset:{HALF + 12288}")
    A.cond += 1
    A(f"""
    s_mov_b32 s76, 0
    s_cmp_lg_u32 {sWAVE}, 3
    s_cbranch_scc1 {lNOX}
    s_cmp_ge_u32 s2, 136
    s_cbranch_scc1 {lNOX}
    s_cmp_ge_u32 s2, 56
    s_cbranch_scc1 {lWO}
    s_mov_b32 s76, 1
    s_add_u32 s62, s2, 1024
    """)
    side_params(A, "s62", 72)
    dma_rows(A, 4, HALF)
    A(f"""
    s_branch {lNOX}
    {lWO}:
    s_mov_b32 s76, 2
    s_sub_u32 s62, s2, 56
    s_lshr_b32 s56, s62, 3
    s_and_b32 s57, s62, 7
    s_mov_b32 s40, s14
    s_mov_b32 s41, s15
    s_mov_b32 s42, 819200
    s_mov_b32 s60, 1280
    s_mul_i32 s61, s57, {80*1280}
    s_lshl_b32 s55, s56, 7
    s_add_u32 s61, s61, s55
    s_mul_i32 s72, s56, {4*20480}
    s_mul_i32 s55, s57, 2560
    s_add_u32 s72, s72, s55
    s_add_u32 s72, s72, {WO}
    s_mov_b32 s73, 20480
    """)
    dma_rows(A, 10, HALF)
    A(f"{lNOX}:")
    A.cond -= 1
    A.wait("x1")
    stamp(A, cfg, 5)
    x_reads(A, 1, 0)
    A(f"""
    v_add_f32 v120, v120, v122
    v_add_f32 v121, v121, v123
    v_mov_b32 v122, v120
    v_mov_b32 v123, v121
    v_permlane32_swap_b32 v120, v122
    v_permlane32_swap_b32 v121, v123
    v_add_f32 v120, v120, v122
    v_add_f32 v121, v121, v123
    v_mul_f32 v120, 0xbacccccd, v120
    v_mul_f32 v121, 0x3acccccd, v121
    v_fma_f32 v122, -v120, v120, v121
    v_max_f32 v122, 0, v122
    v_add_f32 v122, 0x3727c5ac, v122
    v_rsq_f32 v{RSTD}, v122
    """)
    split_hi_lo(A, 120, 122, MF + 1, 123)
    A(f"""
    v_mul_f32 v{LSC}, s84, v{RSTD}
    v_lshl_or_b32 v{MF}, v122, 16, v122
    v_mov_b32 v{MF+2}, 0
    v_mov_b32 v{MF+3}, 0
    s_mov_b32 exec_lo, 0
    v_mov_b32 v{MF}, 0
    v_mov_b32 v{MF+1}, 0
    s_mov_b64 exec, -1
    s_waitcnt vmcnt(0)
    """)
    for d in range(20):
        op = "ds_read_u16_d16_hi" if d % 2 else "ds_read_u16"
        A(f"{op} v{156 + d}, v{aWM} offset:{d*40}\n{op} v{176 + d}, v{aWL} offset:{d*40}")
    A.cond += 1
    A(f"s_cmp_eq_u32 s76, 0\ns_cbranch_scc1 {lSD}\ns_waitcnt lgkmcnt(0)\ns_cmp_eq_u32 s76, 2\ns_cbranch_scc1 {lX2}")
    side_process(A, HALF, 72, 72)
    A(f"s_branch {lSD}\n{lX2}:")
    A("v_mad_u32_u24 v92, v12, s73, v13")
    rho = lambda b, e: (2 * (e // 20) + b) * 20 + e % 20
    for half in range(2):
        for k in range(5):
            b, q = half, k
            R = (72, 124)[half] + 4 * k
            A(f"ds_read_b64_tr_b16 v[{R}:{R+1}], v5 offset:{HALF + rho(b, 8*q)*128}")
            A(f"ds_read_b64_tr_b16 v[{R+2}:{R+3}], v5 offset:{HALF + rho(b, 8*q+4)*128}")
        for k in range(5):
            R = (72, 124)[half] + 4 * k
            A(f"s_waitcnt lgkmcnt({8-2*k})")
            A(f"buffer_store_dwordx4 v[{R}:{R+3}], v92, {SWS}, s72 offen offset:{(half*5+k)*256}{SC}")
    A(f"s_nop 1\n{lSD}:")
    A.cond -= 1
    A("v_add_u32 v3, 0x10000, v2\nv_add_u32 v4, 0x20000, v2\ns_waitcnt lgkmcnt(0)")
    for i in range(10): A(f"v_or_b32 v{WM+i}, v{156+2*i}, v{157+2*i}\nv_or_b32 v{WLf+i}, v{176+2*i}, v{177+2*i}")
    for r in (WM+10, WM+11, WLf+10, WLf+11): A(f"v_mov_b32 v{r}, 0")
    stamp(A, cfg, 6)
    wait_group(A, 0, sCA)
    A.vm = []

def a_addresses(A):
    A("L_addr:")
    A(f"""
    v_and_b32 v192, 31, v1
    v_lshrrev_b32 v193, 5, v1
    s_lshl_b32 s90, {sWAVE}, 5
    v_add_u32 v194, s90, v192
    v_lshl_add_u32 v194, v193, 7, v194
    v_lshlrev_b32 v194, 7, v194
    v_add_u32 v194, {PKV_LDS}, v194
    v_bfe_u32 v195, v1, 1, 1
    v_lshlrev_b32 v195, 2, v195
    v_bfe_u32 v196, v1, 2, 1
    v_lshl_add_u32 v195, v196, 1, v195
    v_and_b32 v196, 1, v1
    v_add_u32 v195, v195, v196
    v_lshl_add_u32 v{aPKW}, v195, 4, v194
    v_mul_u32_u24 v194, 336, v193
    v_lshl_add_u32 v{aKVS}, v192, 4, v194
    s_lshr_b32 s90, {sWAVE}, 1
    s_and_b32 s6, {sWAVE}, 1
    s_lshl_b32 s86, s90, 14
    s_add_u32 s86, s86, {PKV_LDS}
    v_bfe_u32 v192, v1, 2, 2
    v_lshl_add_u32 v192, v193, 3, v192
    v_lshlrev_b32 v192, 7, v192
    v_add_u32 v192, s86, v192
    v_and_b32 v194, 1, v1
    v_lshl_add_u32 v192, v194, 3, v192
    v_bfe_u32 v194, v1, 4, 1
    v_bfe_u32 v195, v1, 1, 1
    v_lshl_add_u32 v194, v194, 1, v195
    v_bfe_u32 v195, v1, 3, 1
    v_lshlrev_b32 v195, 2, v195
    v_bfe_u32 v196, v1, 2, 1
    v_add_u32 v195, v195, v196
    s_lshl_b32 s87, s6, 2
    v_add_u32 v196, s87, v194
    v_add_u32 v197, 5, v194
    v_min_u32 v197, 7, v197
    v_xor_b32 v196, v196, v195
    v_xor_b32 v197, v197, v195
    v_lshl_add_u32 v{aTRA0}, v196, 4, v192
    v_lshl_add_u32 v{aTRB0}, v197, 4, v192
    v_xor_b32 v196, 2, v196
    v_xor_b32 v197, 2, v197
    v_lshl_add_u32 v{aTRA1}, v196, 4, v192
    v_lshl_add_u32 v{aTRB1}, v197, 4, v192
    s_lshl_b32 s3, {sCA}, 4
    s_add_u32 s3, s3, {sRA}
    s_mul_i32 s3, s3, 6784
    s_mul_i32 s87, s90, 3360
    s_add_u32 s3, s3, s87
    s_mul_i32 s87, s6, {8*336}
    s_add_u32 s3, s3, s87
    s_add_u32 s3, s3, {KVP}
    v_lshlrev_b32 v{aKVL}, 4, v0
    """)
    for rnd, dst in ((0, aKVF), (1, aKVF2)):
        A(f"""
        v_add_u32 v199, {256*rnd}, v0
        v_mul_u32_u24 v192, 3121, v199
        v_lshrrev_b32 v192, 16, v192
        v_mul_u32_u24 v193, 21, v192
        v_sub_u32 v193, v199, v193
        v_cmp_le_u32 s[90:91], 10, v192
        v_subrev_u32 v195, 10, v192
        v_cndmask_b32 v195, v192, v195, s[90:91]
        v_cndmask_b32 v196, 0, 1, s[90:91]
        v_and_b32 v194, 1, v195
        v_lshrrev_b32 v195, 1, v195
        v_lshrrev_b32 v197, 4, v193
        v_and_b32 v198, 15, v193
        v_mad_u32_u24 v195, v197, 5, v195
        v_lshlrev_b32 v195, 10, v195
        v_lshl_add_u32 v195, v194, 3, v195
        v_lshrrev_b32 v197, 2, v198
        v_lshlrev_b32 v197, 3, v197
        v_and_b32 v198, 3, v198
        v_add_u32 v197, v197, v198
        v_mad_u32_u24 v197, v196, 36, v197
        v_lshl_add_u32 v195, v197, 4, v195
        v_add_u32 v{dst}, {KVF_LDS}, v195
        """)
    A(f"""
    s_mul_i32 s4, {sCA}, {16*6784}
    s_add_u32 s4, s4, {KVP}
    v_and_b32 v192, 15, v1
    v_bfe_u32 v193, v1, 4, 1
    v_lshrrev_b32 v194, 5, v1
    v_mul_u32_u24 v193, 20480, v193
    v_mul_u32_u24 v194, 1280, v194
    v_lshl_add_u32 v192, v192, 4, v193
    v_add_u32 v{aOST}, v192, v194
    s_lshl_b32 s5, {sRA}, 2
    s_add_u32 s5, s5, {sWAVE}
    s_mul_i32 s5, s5, 40960
    s_lshr_b32 s90, {sCA}, 1
    s_mul_i32 s90, s90, 2560
    s_add_u32 s5, s5, s90
    s_add_u32 s5, s5, {OF}
    v_mul_u32_u24 v{aZ}, 40, v0
    v_add_u32 v{aZ}, {KVF_LDS}, v{aZ}
    s_mul_i32 s53, {sCA}, 163840
    s_lshl_b32 s7, {sWAVE}, 10
    s_add_u32 s53, s53, s7
    s_add_u32 s53, s53, {WQ}
    s_lshl_b32 s54, {sCA}, 13
    s_add_u32 s54, s54, {CSQ}
    s_lshl_b32 s90, {sWAVE}, 11
    s_add_u32 s54, s54, s90
    s_lshl_b32 s90, {sWAVE}, 9
    s_add_u32 s90, s90, {HOLE_LDS}
    v_and_b32 v192, 31, v1
    v_lshlrev_b32 v{aHW}, 4, v192
    v_add_u32 v{aHW}, s90, v{aHW}
    v_lshlrev_b32 v{aHR}, 2, v192
    v_add_u32 v{aHR}, {HOLE_LDS}, v{aHR}
    v_and_b32 v192, 15, v1
    s_and_b32 s90, {sR}, 1
    v_lshl_add_u32 v192, v192, 1, s90
    s_lshr_b32 s90, {sR}, 1
    v_lshl_add_u32 v192, v192, 3, s90
    v_lshrrev_b32 v193, 2, v192
    v_and_b32 v192, 3, v192
    v_lshlrev_b32 v192, 2, v192
    v_lshl_add_u32 v{aGRP}, v193, 7, v192
    s_mul_i32 s88, {sC}, {7*20480}
    s_add_u32 s88, s88, s7
    s_mov_b32 s89, s7
    s_lshr_b32 s90, {sC}, 1
    s_mul_i32 s92, s90, {5*20480}
    s_mul_i32 s91, {sWAVE}, 5120
    s_add_u32 s92, s92, s91
    s_add_u32 s92, s92, {WO}
    s_mul_i32 s52, {sWAVE}, 14
    s_cmp_eq_u32 {sWAVE}, 3
    s_cselect_b32 s52, 41, s52
    s_lshl_b32 s52, s52, 10
    s_mul_i32 s93, s90, {5*55296}
    s_add_u32 s93, s93, s52
    s_add_u32 s93, s93, {W2}
    
    v_and_b32 v116, 31, v1
    v_lshrrev_b32 v117, 5, v1
    v_bfe_u32 v118, v1, 1, 3
    v_xor_b32 v117, v117, v118
    v_lshlrev_b32 v116, 7, v116
    v_add_u32 v116, s64, v116
    v_lshl_add_u32 v112, v117, 4, v116
    v_xor_b32 v113, 32, v112
    v_xor_b32 v114, 64, v112
    v_xor_b32 v115, 96, v112
    v_mov_b32 v120, 0
    v_mov_b32 v121, 0
    v_mov_b32 v122, 0
    v_mov_b32 v123, 0
    v_and_b32 v192, 31, v1
    v_lshrrev_b32 v193, 5, v1
    v_bfe_u32 v194, v1, 2, 1
    v_lshrrev_b32 v195, 3, v192
    v_and_b32 v196, 3, v1
    v_lshl_add_u32 v195, v195, 2, v196
    v_mul_u32_u24 v196, 800, v193
    v_lshl_add_u32 v196, v195, 1, v196
    v_mov_b32 v197, 2048
    v_cmp_eq_u32 s[90:91], v193, v194
    v_add_u32 v198, 32, v196
    v_cndmask_b32 v196, v197, v196, s[90:91]
    v_cndmask_b32 v198, v197, v198, s[90:91]
    v_cmp_gt_u32 s[90:91], 8, v192
    s_add_u32 s86, s64, {20480 + 10240}
    v_add_u32 v{aWM}, s86, v196
    v_cndmask_b32 v198, v197, v198, s[90:91]
    v_add_u32 v{aWL}, s86, v198
    s_setpc_b64 s[80:81]
    """)

W1G = f"s_mov_b32 m0, s89\ns_add_u32 s89, s89, 4096\nbuffer_load_dwordx4 v2, {SW1}, s88 offen{SC} lds\ns_add_u32 s88, s88, 4096"

def woreg(T, st):
    k = 5 * T + st
    return ar(160 + 4 * k, 4) if k < 24 else vr(WO25, 4)
def wo_groups():
    g = []
    for T in range(5):
        for st in range(5):
            pre = f"s_add_u32 s98, s92, {T*20480 + (st//4)*4096}\n" if st % 4 == 0 else ""
            g.append((pre + f"buffer_load_dwordx4 {woreg(T,st)}, v2, {SWS}, s98 offen offset:{(st%4)*1024}{SC}", "wo"))
    return g
def w2reg(step, T):
    k = step * 5 + T
    return ar(4 * k, 4) if k < 64 else vr(216 + 4 * (k - 64), 4)
def w2_groups(k0, k1):
    items = sorted(((k % 5, k // 5) for k in range(k0, k1)))
    g = []; cur = None
    for T, st in items:
        key = (T, st // 4)
        pre = f"s_add_u32 s99, s93, {T*55296 + (st//4)*4096}\n" if key != cur else ""
        cur = key
        g.append((pre + f"buffer_load_dwordx4 {w2reg(st,T)}, v2, {SWS}, s99 offen offset:{(st%4)*1024}{SC}", "w2"))
    return g

def softmax_routine(A, ndma):
    A("L_smx:\ns_nop 1")
    body = []
    B = body.append
    for u in range(3):
        A(f"v_mfma_f32_32x32x16_bf16 {vr(PP,16)}, {vr(WM+4*u,4)}, {vr(U+4*u,4)}, {'0' if u==0 else vr(PP,16)}")
    for u in range(3):
        A(f"v_mfma_f32_32x32x16_bf16 {vr(PL,16)}, {vr(WLf+4*u,4)}, {vr(U+4*u,4)}, {'0' if u==0 else vr(PL,16)}")
    A(W1G)
    p = [PP + i for i in range(20)]
    for k in range(4):
        B(f"v_max3_f32 v{TM+k}, v{p[4*k]}, v{p[4*k+1]}, v{p[4*k+2]}")
        B(f"v_min3_f32 v{TM+4+k}, v{p[4*k]}, v{p[4*k+1]}, v{p[4*k+2]}")
    for k in range(4):
        B(f"v_max3_f32 v{TM+k}, v{TM+k}, v{p[4*k+3]}, v{p[16+k]}")
        B(f"v_min3_f32 v{TM+4+k}, v{TM+4+k}, v{p[4*k+3]}, v{p[16+k]}")
    B(f"v_max3_f32 v{TM}, v{TM}, v{TM+1}, v{TM+2}")
    B(f"v_min3_f32 v{TM+4}, v{TM+4}, v{TM+5}, v{TM+6}")
    B(f"v_max_f32 v{TM}, v{TM}, v{TM+3}")
    B(f"v_min_f32 v{TM+4}, v{TM+4}, v{TM+7}")
    B(f"v_mul_f32 v{TM+8}, v{LSC}, v{TM}")
    B(f"v_mul_f32 v{TM+10}, v{LSC}, v{TM+4}")
    for i in range(0, 20, 2):
        B(f"v_pk_fma_f32 {vr(EP+i,2)}, {vr(PP+i,2)}, {vr(LSC,2)}, {vr(TM+8,2)} op_sel_hi:[1,0,0] neg_lo:[0,0,1] neg_hi:[0,0,1]")
    for i in range(0, 20, 2):
        B(f"v_pk_fma_f32 {vr(EN+i,2)}, {vr(PP+i,2)}, {vr(LSC,2)}, {vr(TM+10,2)} op_sel_hi:[1,0,0] neg_lo:[1,0,0] neg_hi:[1,0,0]")
    for i in range(40):
        B(f"v_exp_f32 v{EP+i}, v{EP+i}")
    ET = ((EP, TM), (EN, TM + 6))
    for E, t in ET:
        B(f"v_pk_add_f32 {vr(t,2)}, {vr(E,2)}, {vr(E+2,2)}")
        B(f"v_pk_add_f32 {vr(t+2,2)}, {vr(E+4,2)}, {vr(E+6,2)}")
        B(f"v_pk_add_f32 {vr(t+4,2)}, {vr(E+8,2)}, {vr(E+10,2)}")
    for E, t in ET:
        B(f"v_pk_add_f32 {vr(t,2)}, {vr(t,2)}, {vr(E+12,2)}")
        B(f"v_pk_add_f32 {vr(t+2,2)}, {vr(t+2,2)}, {vr(E+14,2)}")
        B(f"v_pk_add_f32 {vr(t+4,2)}, {vr(t+4,2)}, {vr(E+16,2)}")
    for E, t in ET:
        B(f"v_pk_add_f32 {vr(t,2)}, {vr(t,2)}, {vr(E+18,2)}")
        B(f"v_pk_add_f32 {vr(t+2,2)}, {vr(t+2,2)}, {vr(t+4,2)}")
    for E, t in ET: B(f"v_pk_add_f32 {vr(t,2)}, {vr(t,2)}, {vr(t+2,2)}")
    for E, t in ET: B(f"v_add_f32 v{t}, v{t}, v{t+1}")
    for E, t in ET: B(f"v_rcp_f32 v{t}, v{t}")
    for E, t in ET:
        for i in range(0, 20, 2):
            B(f"v_pk_mul_f32 {vr(E+i,2)}, {vr(E+i,2)}, {vr(t,2)} op_sel_hi:[1,0]")
    for i in range(20):
        B(f"v_cvt_pk_bf16_f32 v{PH+i}, v{EP+2*i}, v{EP+2*i+1}")
    step = len(body) // max(ndma - 1, 1)
    left = ndma - 1
    for i, l in enumerate(body):
        A(l)
        if left and i % step == step - 1:
            A(W1G); left -= 1
    assert left == 0
    A("s_setpc_b64 s[80:81]")

NSMX = 6
def call_smx(A):
    A("s_call_b64 s[80:81], L_smx\ns_nop 1")
    for _ in range(NSMX): A.vm.append(("w1", True))

def lds_base(off):
    return ("v2", "v3", "v4")[off >> 16], off & 0xffff

def store_parity(A, par, P, ntile, voff, soff, stride, tag, local=False):
    def body(E):
        lo, le = A.label("odd"), A.label("se")
        A(f"s_bitcmp1_b32 {par}, 0\ns_cbranch_scc1 {lo}")
        h = ntile // 2
        for k in range(h):
            E(f"buffer_store_dwordx4 {vr(P+4*k,4)}, {voff}, {SWS}, {soff} offen offset:{k*stride}@")
        E(f"buffer_store_dwordx2 {vr(P+4*h,2)}, {voff}, {SWS}, {soff} offen offset:{h*stride}@")
        A(f"s_branch {le}\n{lo}:")
        E(f"buffer_store_dwordx2 {vr(P,2)}, {voff}, {SWS}, {soff} offen offset:{h*stride+8}@")
        for k in range(h):
            o = (h + 1 + k) * stride
            if o >= 4096:
                A(f"s_add_u32 s56, {soff}, 4096")
                E(f"buffer_store_dwordx4 {vr(P+2+4*k,4)}, {voff}, {SWS}, s56 offen offset:{o-4096}@")
            else:
                E(f"buffer_store_dwordx4 {vr(P+2+4*k,4)}, {voff}, {SWS}, {soff} offen offset:{o}@")
        A(f"{le}:")
    if local: either(A, body, tag)
    else:
        A.cond += 1
        body(lambda t: A(t.replace("@", " sc1"), tag))
        A.cond -= 1

def phase_A(A, cfg):
    A("; ---- phase A ----")
    WL = f"buffer_load_dwordx4 v2, {SWS}, s53 offen{SC} lds\ns_add_u32 m0, m0, 4096\ns_add_u32 s53, s53, 4096"
    A("s_mov_b32 m0, s7")
    AHEAD = cfg.aheadA
    A(WL, "b0"); A(WL, "b0"); A(WL, "b0")
    for i in range(2):
        A(f"buffer_load_dwordx4 {vr(124+4*i,4)}, v2, {SWS}, s54 offen offset:{i*1024}{SC}", "cs")
    for b in range(1, AHEAD):
        for _ in range(3): A(WL, f"b{b}")
    accs = (ACK, ACV, ACL)
    def reads(blk):
        buf = WA0 if blk % 2 == 0 else WA1
        out = []
        for j in range(12):
            b, o = lds_base((12 * blk + j) * 1024)
            out.append(f"ds_read_b128 {ar(buf+4*j,4)}, {b} offset:{o}")
        return out
    side = []
    for i in range(1, 2):
        side += [f"v_add_f32 v{124+j}, v{124+j}, v{124+4*i+j}" for j in range(4)]
    side += [f"v_mov_b32 v{128+j}, v{124+j}" for j in range(4)]
    side += [f"v_permlane32_swap_b32 v{124+j}, v{128+j}" for j in range(4)]
    side += [f"v_add_f32 v{124+j}, v{124+j}, v{128+j}" for j in range(4)]
    side += ["ds_write_b128 v235, v[124:127]"]
    side2 = [f"ds_read_b32 v{124+4*w+T}, v240 offset:{w*512+T*128}" for w in range(4) for T in range(4)]
    side3 = [f"v_add_f32 v{124+T}, v{124+T}, v{124+4*w+T}" for w in range(1, 4) for T in range(4)]
    for T in range(4):
        F = CSF + 4 * T
        side3 += [f"v_cvt_pk_bf16_f32 v{F+1}, v{124+T}, 0", f"v_lshlrev_b32 v{128+T}, 16, v{F+1}", f"v_sub_f32 v{128+T}, v{124+T}, v{128+T}",
                  f"v_cvt_pk_bf16_f32 v{F}, v{124+T}, v{128+T}", f"v_mov_b32 v{F+2}, 0", f"v_mov_b32 v{F+3}, 0"]
    stamp(A, cfg, 7)
    A.wait("b0"); A("s_barrier")
    signal_global(A, 5)
    for r in reads(0): A(r)
    lchk, lslow = A.label("chk"), A.label("slow")
    for blk in range(10):
        buf = WA0 if blk % 2 == 0 else WA1
        nxt = []
        if blk + AHEAD < 10: A.bg += [(WL, f"b{blk+AHEAD}")] * 3
        if blk >= 5: A.bg += [(WL, "tq")] * 2
        if blk == 7:
            A.bg.insert(0, (f"v_lshlrev_b32 v6, 7, v1\ns_mov_b32 s58, {FLG + 5*8192}\nbuffer_load_dwordx4 v[196:199], v6, {SWS}, s58 offen sc1\nbuffer_load_dword v200, v{aGRP}, {SWS}, s58 offen sc1", "f5"))
        if blk + 1 < 10:
            A.wait(f"b{blk+1}", "lgkmcnt(0)")
            A("s_barrier")
            nxt = reads(blk + 1)
        else:
            A.wait("f5", "lgkmcnt(0)")
            A.cond += 1
            A(f"""
            s_cmp_lg_u32 {sWAVE}, 0
            s_cbranch_scc1 {lchk}
            v_xor_b32 v196, {sNONCE}, v196
            v_xor_b32 v197, {sNONCE}, v197
            v_xor_b32 v198, {sNONCE}, v198
            v_xor_b32 v199, {sNONCE}, v199
            v_or3_b32 v196, v196, v197, v198
            v_or_b32 v196, v196, v199
            v_cmp_lt_u32 vcc, 15, v196
            v_mov_b32 v201, 0
            v_mov_b32 v202, {LOC_LDS}
            s_cbranch_vccnz {lslow}
            v_cmp_ne_u32 vcc, s76, v200
            s_cbranch_vccnz {lslow}x
            v_mov_b32 v201, {cfg.local}
            s_branch {lslow}x
            {lslow}:
            """)
            poll_global(A, 5, 196)
            A(f"{lslow}x:\nds_write_b32 v202, v201\ns_waitcnt lgkmcnt(0)\n{lchk}:")
            A.cond -= 1
            A("s_barrier")
        if blk == 1: A.wait("cs")
        sw = side if blk == 1 else side2 if blk == 3 else side3 if blk in (4, 5) else []
        for j in range(12):
            s = 4 * blk + j // 3
            acc = accs[j % 3]
            A(f"v_mfma_f32_32x32x16_bf16 {vr(acc,16)}, {ar(buf+4*j,4)}, {ar(4*s,4)}, {'0' if s==0 else vr(acc,16)}")
            if nxt: A(nxt[j])
            if j % 2 == 0: A.sprinkle(1)
            for _ in range(2):
                if sw: A(sw.pop(0))
    assert not A.bg and not side and not side2 and not side3
    for T in range(3):
        A(f"v_mfma_f32_32x32x16_bf16 {vr(accs[T],16)}, {vr(CSF+4*T,4)}, {vr(MF,4)}, {vr(accs[T],16)}")
    stamp(A, cfg, 12)
    A(f"""
    v_mov_b32 v{U+10}, 0
    v_mov_b32 v{U+11}, 0
    v_mov_b32 v{VV+10}, 0x3f80
    v_mov_b32 v{VV+11}, 0
    """)
    A(f"v_mov_b32 v202, {LOC_LDS}\nds_read_b32 v201, v202")
    A.bg += wo_groups() + [(W1G, "w1")] * (25 - 2 * NSMX)
    A.pace(cfg.iv_k, cfg.n_k)
    for ch in range(1, 8): A(f"v_xor_b32 v{96+ch}, {ch*16}, v{aPKW}")
    for i in range(8): A(f"v_cvt_pk_bf16_f32 v{U+i}, v{ACK+2*i}, v{ACK+2*i+1}")
    for i in range(8): A(f"v_pk_mul_f32 {vr(ACV+2*i,2)}, {vr(ACV+2*i,2)}, {vr(RSTD,2)} op_sel_hi:[1,0]")
    for i in range(8): A(f"v_cvt_pk_bf16_f32 v{VV+i}, v{ACV+2*i}, v{ACV+2*i+1}")
    A(f"""
    v_cvt_pk_bf16_f32 v{U+8}, v{ACL+4}, v{ACL+5}
    v_cvt_pk_bf16_f32 v{U+9}, v{ACL+6}, v{ACL+7}
    v_pk_mul_f32 {vr(ACL+8,2)}, {vr(ACL+8,2)}, {vr(RSTD,2)} op_sel_hi:[1,0]
    v_pk_mul_f32 {vr(ACL+10,2)}, {vr(ACL+10,2)}, {vr(RSTD,2)} op_sel_hi:[1,0]
    v_cvt_pk_bf16_f32 v{QL}, v{ACL}, v{ACL+1}
    v_cvt_pk_bf16_f32 v{QL+1}, v{ACL+2}, v{ACL+3}
    v_cvt_pk_bf16_f32 v{VV+8}, v{ACL+8}, v{ACL+9}
    v_cvt_pk_bf16_f32 v{VV+9}, v{ACL+10}, v{ACL+11}
    """)
    A(f"s_waitcnt lgkmcnt(0)\nv_readfirstlane_b32 {sLOCAL}, v201")
    for ch in range(5, 8): A(f"ds_write_b128 v{96+ch}, {vr(VV+4*(ch-5),4)}")
    A.pace(0)
    call_smx(A)
    for ch in range(5):
        A(f"ds_write_b128 v{aPKW if ch == 0 else 96+ch}, {vr(PH+4*ch,4)}")
    A.wait("tq", "lgkmcnt(0)")
    A("s_barrier")
    for s in range(8):
        b = 112 + 8 * s
        A(f"ds_read_b64_tr_b16 {vr(b,2)}, v{aTRA0} offset:{s*2048}")
        A(f"ds_read_b64_tr_b16 {vr(b+2,2)}, v{aTRA1} offset:{s*2048+512}")
        A(f"ds_read_b64_tr_b16 {vr(b+4,2)}, v{aTRB0} offset:{s*2048}")
        A(f"ds_read_b64_tr_b16 {vr(b+6,2)}, v{aTRB1} offset:{s*2048+512}")
        if s >= 2:
            t = s - 2
            A("s_waitcnt lgkmcnt(8)")
            A(f"v_mfma_f32_32x32x16_bf16 {vr(48,16)}, {vr(112+8*t,4)}, {vr(116+8*t,4)}, {'0' if t==0 else vr(48,16)}")
    for t in (6, 7):
        A(f"s_waitcnt lgkmcnt({4 if t==6 else 0})")
        A(f"v_mfma_f32_32x32x16_bf16 {vr(48,16)}, {vr(112+8*t,4)}, {vr(116+8*t,4)}, {vr(48,16)}")
    P2 = 176
    for s in range(8):
        b, o = lds_base((120 + s) * 1024)
        A(f"ds_read_b128 {vr(P2+4*(s%10),4)}, {b} offset:{o}")
    lsk = A.label("kvst")
    A(f"""
    s_mov_b32 s55, 0x1fffff
    s_mov_b32 exec_lo, s55
    s_mov_b32 exec_hi, s55
    s_cmp_eq_u32 s6, 1
    """)
    A(f"buffer_store_dwordx4 {vr(48,4)}, v{aKVS}, {SWS}, s3 offen sc1", "kvp")
    A.cond += 1
    A(f"s_cbranch_scc1 {lsk}")
    for k in range(1, 4):
        A(f"buffer_store_dwordx4 {vr(48+4*k,4)}, v{aKVS}, {SWS}, s3 offen offset:{672*k} sc1", "kvp")
    A(f"{lsk}:")
    A.cond -= 1
    A("s_mov_b64 exec, -1")
    stamp(A, cfg, 13)
    SIG = cfg.p2sig
    for s in range(40):
        if s == SIG:
            signal_group(A, 1, sCA, sRA, "kvp")
            stamp(A, cfg, 14)
            A.pace(cfg.iv_p2, cfg.n_p2)
        A(f"s_waitcnt lgkmcnt({min(7, 39-s)})")
        A(f"v_mfma_f32_32x32x16_bf16 {vr(ACQ,16)}, {vr(P2+4*(s%10),4)}, {ar(4*s,4)}, {'0' if s==0 else vr(ACQ,16)}")
        if s + 8 < 40:
            b, o = lds_base((120 + s + 8) * 1024)
            A(f"ds_read_b128 {vr(P2+4*((s+8)%10),4)}, {b} offset:{o}")
    A(f"v_mfma_f32_32x32x16_bf16 {vr(ACQ,16)}, {vr(CSF+12,4)}, {vr(MF,4)}, {vr(ACQ,16)}")
    A.pace(0)
    A.bg += w2_groups(0, 40)
    stamp(A, cfg, 15)
    A(f"""
    s_barrier
    v_mov_b32 v32, 0
    v_mov_b32 v33, 0
    v_mov_b32 v{U+8}, v{QL}
    v_mov_b32 v{U+9}, v{QL+1}
    v_mov_b32 v{U+10}, 0
    v_mov_b32 v{U+11}, 0
    v_add_u32 v34, 4096, v{aKVL}
    v_min_u32 v34, 6704, v34
    """)
    for k in range(5): A(f"ds_write_b64 v{aZ}, v[32:33] offset:{8*k}")
    for i in range(8): A(f"v_cvt_pk_bf16_f32 v{U+i}, v{ACQ+2*i}, v{ACQ+2*i+1}")
    call_smx(A)
    A(f"v_cmp_gt_u32 vcc, 164, v0\ns_waitcnt lgkmcnt(0)\ns_mov_b64 s[86:87], vcc")
    A.sprinkle(cfg.n_q)
    stamp(A, cfg, 16)
    wait_group(A, 1, sCA)
    stamp(A, cfg, 17)
    RB = 40
    for p in range(16):
        A(f"buffer_load_dwordx4 {vr(RB+8*p,4)}, v{aKVL}, {SWS}, s4 offen sc1", f"p{p}")
        A(f"buffer_load_dwordx4 {vr(RB+8*p+4,4)}, v34, {SWS}, s4 offen sc1", f"p{p}")
        if p < 15: A("s_add_u32 s4, s4, 6784")
    A.sprinkle(cfg.n_red)
    for p in range(1, 16):
        A.wait(f"p{p}")
        for j in range(0, 8, 2):
            A(f"v_pk_add_f32 {vr(RB+j,2)}, {vr(RB+j,2)}, {vr(RB+8*p+j,2)}")
    for j in range(4): A(f"v_cvt_pk_bf16_f32 v{RB+j}, v{RB+2*j}, v{RB+2*j+1}")
    A(f"""
    ds_write_b64 v{aKVF}, {vr(RB,2)}
    s_mov_b64 exec, s[86:87]
    ds_write_b64 v{aKVF2}, {vr(RB+2,2)}
    s_mov_b64 exec, -1
    s_waitcnt lgkmcnt(0)
    s_barrier
    """)
    stamp(A, cfg, 18)
    b, o = lds_base(KVF_LDS)
    for i in (0, 5, 1, 6, 2, 7, 3, 8, 4, 9): A(f"ds_read_b128 {vr(40+4*i,4)}, {b} offset:{o + i*1024}")
    for s5 in range(5):
        for tau in range(2):
            i = tau * 5 + s5
            A(f"s_waitcnt lgkmcnt({9-2*s5-tau})")
            A(f"v_mfma_f32_32x32x16_bf16 {vr(96+16*tau,16)}, {vr(40+4*i,4)}, {vr(PH+4*s5,4)}, {'0' if s5==0 else vr(96+16*tau,16)}")
    A(f"v_add_f32 v34, 0x358637bd, v{96+20}\nv_rcp_f32 v34, v34")
    for i in range(0, 20, 2):
        A(f"v_pk_mul_f32 {vr(96+i,2)}, {vr(96+i,2)}, v[34:35] op_sel_hi:[1,0]")
    for i in range(10): A(f"v_cvt_pk_bf16_f32 v{40+i}, v{96+2*i}, v{97+2*i}")
    store_parity(A, sCA, 40, 5, f"v{aOST}", "s5", 256, "o", cfg.mapA == cfg.mapB)
    stamp(A, cfg, 19)

BRED_LDS = 100 * 1024
CF1 = 180
def phase_B(A, cfg):
    OFR, ACC = 8, 88
    A("; ---- phase B ----")
    A(f"""
    s_lshr_b32 s62, {sC}, 1
    s_and_b32 s63, {sC}, 1
    s_lshl_b32 s64, {sR}, 3
    s_lshl_b32 s55, s63, 2
    s_add_u32 s64, s64, s55
    s_add_u32 s65, s64, {sWAVE}
    s_mul_i32 s61, s65, 20480
    s_mul_i32 s55, s62, 160
    s_add_u32 s61, s61, s55
    v_and_b32 v8, 15, v1
    v_lshrrev_b32 v9, 4, v1
    v_mul_u32_u24 v8, 1280, v8
    v_lshl_add_u32 v8, v9, 3, v8
    v_lshrrev_b32 v9, 5, v1
    v_and_b32 v10, 31, v1
    v_min_u32 v10, 27, v10
    v_mul_u32_u24 v9, 6912, v9
    v_lshl_add_u32 v9, v10, 4, v9
    s_mul_i32 s66, {sC}, 448
    s_add_u32 s66, s66, {CS1}
    """)
    signal_group(A, 2, sRA, sCA, "o", cfg.mapA == cfg.mapB)
    stamp(A, cfg, 20)
    for T in range(5):
        A(f"buffer_load_dwordx2 {vr(XR+2*T,2)}, v8, {SX}, s61 offen offset:{T*32}", "xr")
    for i in range(10):
        A(f"buffer_load_dwordx4 {vr(12+4*i,4)}, v9, {SWS}, s66 offen{SC}", "c1")
        if i < 9: A(f"s_add_u32 s66, s66, {2*6912}")
    must = sum(1 for t, tg in A.bg if tg in ("wo", "w1"))
    A.sprinkle(max(must, cfg.n_h2))
    for i in range(4):
        A(f"""
        s_add_u32 s55, {sWAVE}, {i}
        s_and_b32 s55, s55, 3
        s_add_u32 s56, s55, s64
        s_mul_i32 s{66+i}, s56, 20480
        s_mul_i32 s56, {sWAVE}, 5120
        s_add_u32 s{66+i}, s{66+i}, s56
        s_add_u32 s{66+i}, s{66+i}, {OF}
        s_mul_i32 s55, s55, 15360
        s_add_u32 s55, s55, {BRED_LDS + max(i-1,0)*5120}
        v_add_u32 v{168+i}, s55, v2
        """)
    A(f"""
    s_mul_i32 s60, s65, 20480
    s_lshr_b32 s55, s62, 1
    s_mul_i32 s55, s55, 5120
    s_add_u32 s60, s60, s55
    s_add_u32 s60, s60, {HF}
    s_lshl_b32 s61, s65, 10
    s_lshl_b32 s55, s62, 7
    s_add_u32 s61, s61, s55
    s_add_u32 s61, s61, {STT}
    v_lshlrev_b32 v172, 3, v1
    s_lshl_b32 s55, {sWAVE}, 9
    s_add_u32 s55, s55, {HOLE_LDS}
    v_lshlrev_b32 v10, 4, v10
    v_add_u32 v10, s55, v10
    v_and_b32 v11, 15, v1
    v_lshlrev_b32 v11, 2, v11
    v_add_u32 v11, s55, v11
    """)
    A.wait("c1")
    for i in range(1, 10):
        A(f"v_pk_add_f32 v[12:13], v[12:13], {vr(12+4*i,2)}\nv_pk_add_f32 v[14:15], v[14:15], {vr(14+4*i,2)}")
    for j in range(4): A(f"v_mov_b32 v{16+j}, v{12+j}")
    for j in range(4): A(f"v_permlane32_swap_b32 v{12+j}, v{16+j}")
    A("v_pk_add_f32 v[12:13], v[12:13], v[16:17]\nv_pk_add_f32 v[14:15], v[14:15], v[18:19]\nds_write_b128 v10, v[12:15]\ns_waitcnt lgkmcnt(0)")
    for T in range(7): A(f"ds_read_b32 v{20+T}, v11 offset:{T*64}")
    A("s_waitcnt lgkmcnt(0)")
    for T in range(7):
        F = CF1 + 4 * T
        A(f"""
        v_cvt_pk_bf16_f32 v{F+1}, v{20+T}, 0
        v_lshlrev_b32 v{F+2}, 16, v{F+1}
        v_sub_f32 v{F+2}, v{20+T}, v{F+2}
        v_cvt_pk_bf16_f32 v{F}, v{20+T}, v{F+2}
        """)
    stamp(A, cfg, 24)
    wait_group(A, 2, sR)
    stamp(A, cfg, 21)
    def oload(st, i):
        if st < 4:
            A(f"buffer_load_dwordx4 {vr(OFR+4*(4*st+i),4)}, v2, {SWS}, s{66+i} offen offset:{st*1024}{SC}", f"o{st}{i}")
        else:
            A(f"s_add_u32 s55, s{66+i}, 4096\nbuffer_load_dwordx4 {vr(OFR+4*(4*st+i),4)}, v2, {SWS}, s55 offen{SC}", f"o{st}{i}")
    order = [(st, i) for st in range(5) for i in (1, 2, 3)] + [(st, 0) for st in range(5)]
    W = cfg.aheadB
    for e in order[:W]: oload(*e)
    wr = [(i, T) for i in (1, 2, 3) for T in range(5)]
    for n, (st, i) in enumerate(order):
        A.wait(f"o{st}{i}")
        for T in range(5):
            acc = vr(ACC + 4 * (5 * i + T), 4)
            A(f"v_mfma_f32_16x16x32_bf16 {acc}, {woreg(T,st)}, {vr(OFR+4*(4*st+i),4)}, {'0' if st==0 else acc}")
            if T == 1 and n + W < len(order): oload(*order[n + W])
            if i == 0 and (5 * st + T) >= 2 and wr and (5 * st + T) % 3 != 0:
                wi, wT = wr.pop(0)
                A(f"ds_write_b128 v{168+wi}, {vr(ACC+4*(5*wi+wT),4)} offset:{wT*1024}")
    for wi, wT in wr: A(f"ds_write_b128 v{168+wi}, {vr(ACC+4*(5*wi+wT),4)} offset:{wT*1024}")
    stamp(A, cfg, 22)
    A.sprinkle(cfg.n_b)
    for T in range(5):
        A(f"v_lshlrev_b32 v{68+4*(T%2)}, 16, v{XR+2*T}\nv_and_b32 v{69+4*(T%2)}, 0xffff0000, v{XR+2*T}")
        A(f"v_lshlrev_b32 v{70+4*(T%2)}, 16, v{XR+2*T+1}\nv_and_b32 v{71+4*(T%2)}, 0xffff0000, v{XR+2*T+1}")
        A(f"v_pk_add_f32 {vr(ACC+4*T,2)}, {vr(ACC+4*T,2)}, {vr(68+4*(T%2),2)}")
        A(f"v_pk_add_f32 {vr(ACC+4*T+2,2)}, {vr(ACC+4*T+2,2)}, {vr(70+4*(T%2),2)}")
    A("s_waitcnt lgkmcnt(0)\ns_barrier")
    for k in range(15): A(f"ds_read_b128 {vr(8+4*k,4)}, v168 offset:{k*1024}")
    for k in range(15):
        T = k % 5
        A(f"s_waitcnt lgkmcnt({14-k})")
        A(f"v_pk_add_f32 {vr(ACC+4*T,2)}, {vr(ACC+4*T,2)}, {vr(8+4*k,2)}")
        A(f"v_pk_add_f32 {vr(ACC+4*T+2,2)}, {vr(ACC+4*T+2,2)}, {vr(10+4*k,2)}")
    for i in range(10): A(f"v_cvt_pk_bf16_f32 v{HK+i}, v{ACC+2*i}, v{ACC+2*i+1}")
    store_parity(A, "s62", HK, 5, "v2", "s60", 1024, "h", True)
    A(f"v_pk_add_f32 v[8:9], {vr(ACC,2)}, {vr(ACC+2,2)}\nv_pk_mul_f32 v[10:11], {vr(ACC,2)}, {vr(ACC,2)}")
    A(f"v_pk_fma_f32 v[10:11], {vr(ACC+2,2)}, {vr(ACC+2,2)}, v[10:11]")
    for i in range(4, 20, 2):
        A(f"v_pk_add_f32 v[8:9], v[8:9], {vr(ACC+i,2)}\nv_pk_fma_f32 v[10:11], {vr(ACC+i,2)}, {vr(ACC+i,2)}, v[10:11]")
    A("v_add_f32 v8, v8, v9\nv_add_f32 v9, v10, v11")
    allreduce_16_32(A, [(8, 10), (9, 11)])
    A("s_mov_b64 exec, 0xffff")
    either(A, lambda E: E(f"buffer_store_dwordx2 v[8:9], v172, {SWS}, s61 offen@"), "h")
    A("s_mov_b64 exec, -1")
    stamp(A, cfg, 23)

WBA, CS_A = 196, 228
def phase_C(A, cfg):
    HFR, ACC, ST = 8, 168, 224
    A("; ---- phase C ----")
    for T in range(7):
        A(f"v_accvgpr_write_b32 a{CS_A+4*T}, v{CF1+4*T}\nv_accvgpr_write_b32 a{CS_A+4*T+1}, v{CF1+4*T+1}")
        A(f"v_accvgpr_write_b32 a{CS_A+4*T+2}, 0\nv_accvgpr_write_b32 a{CS_A+4*T+3}, 0")
    A(f"""
    s_lshl_b32 s64, {sR}, 3
    s_lshl_b32 s55, {sWAVE}, 1
    s_add_u32 s64, s64, s55
    s_mul_i32 s60, s64, 20480
    s_add_u32 s60, s60, {HF}
    s_add_u32 s61, s60, 20480
    s_lshl_b32 s62, s64, 10
    s_add_u32 s62, s62, {STT}
    v_and_b32 v5, 15, v1
    v_lshrrev_b32 v12, 4, v1
    v_lshlrev_b32 v5, 3, v5
    v_lshl_add_u32 v5, v12, 8, v5
    s_mul_i32 s66, s64, 55296
    s_lshr_b32 s55, {sC}, 1
    s_mul_i32 s55, s55, 7168
    s_add_u32 s66, s66, s55
    s_add_u32 s66, s66, {H1F}
    s_add_u32 s67, s66, 55296
    s_add_u32 s68, s66, 4096
    s_add_u32 s69, s67, 4096
    """)
    signal_group(A, 3, sR, sC, "h", True)
    stamp(A, cfg, 30)
    for _ in range(10): A(W1G, "w1b")
    A.bg += w2_groups(40, 49)
    A.sprinkle(cfg.n_h3)
    A.wait("w1b")
    stamp(A, cfg, 31)
    wait_group(A, 3, sR)
    stamp(A, cfg, 32)
    def hl(s):
        for i in range(2):
            A(f"buffer_load_dwordx4 {vr(HFR+8*s+4*i,4)}, v2, {SWS}, s{60+i} offen offset:{(s%4)*1024}{cfg.ld}", f"h{s}")
        if s % 4 == 3 and s < 19: A("s_add_u32 s60, s60, 4096\ns_add_u32 s61, s61, 4096")
    W = cfg.aheadC
    hl(0)
    for i in range(2):
        for j in range(2):
            A(f"buffer_load_dwordx2 {vr(ST+4*i+2*j,2)}, v5, {SWS}, s62 offen offset:{i*1024+j*128}{cfg.ld}", "st")
    for s in range(1, W): hl(s)
    seq = [(s, T) for s in range(20) for T in range(7)]
    NB = 8
    def rd(k):
        s, T = seq[k]
        b, o = lds_base(T * 20480 + s * 1024)
        A(f"ds_read_b128 {ar(WBA+4*(k%NB),4)}, {b} offset:{o}")
    for k in range(6): rd(k)
    side = [f"v_add_f32 v{ST}, v{ST}, v{ST+2}", f"v_add_f32 v{ST+4}, v{ST+4}, v{ST+6}"]
    pairs = [(ST, ST + 2), (ST + 4, ST + 6)]
    for sw in ("v_permlane16_swap_b32", "v_permlane32_swap_b32"):
        side += [f"v_mov_b32 v{t}, v{v}" for v, t in pairs] + [f"{sw} v{v}, v{t}" for v, t in pairs] + [f"v_add_f32 v{v}, v{v}, v{t}" for v, t in pairs]
    side += ["v_cmp_gt_u32 vcc, 16, v1"]
    for i in range(2):
        v, F = ST + 4 * i, 232 + 4 * i
        side += [f"v_mul_f32 v{v}, 0xbacccccd, v{v}", f"v_cndmask_b32 v{v}, 0, v{v}, vcc", f"v_cvt_pk_bf16_f32 v{F}, v{v}, v{v}", f"v_lshlrev_b32 v{v+1}, 16, v{F}",
                 f"v_sub_f32 v{v+1}, v{v}, v{v+1}", f"v_cvt_pk_bf16_f32 v{F+1}, v{v+1}, 0", f"v_mov_b32 v{F+2}, 0", f"v_mov_b32 v{F+3}, 0"]
    for k, (s, T) in enumerate(seq):
        if T == 0: A.wait(f"h{s}")
        if k == 21: A.wait("st")
        if k % 2 == 0: A(f"s_waitcnt lgkmcnt({max(0, min(4, len(seq)-2-k))})")
        for i in range(2):
            acc = vr(ACC + 4 * (7 * i + T), 4)
            A(f"v_mfma_f32_16x16x32_bf16 {acc}, {ar(WBA+4*(k%NB),4)}, {vr(HFR+8*s+4*i,4)}, {'0' if s==0 else acc}")
            if i == 0 and k + 6 < len(seq): rd(k + 6)
        if k >= 21 and k % 2 == 1 and side: A(side.pop(0))
        if T == 1 and s + W < 20: hl(s + W)
        if k == cfg.c_from: A.pace(cfg.iv_c, cfg.n_c)
    A.pace(0)
    assert not side
    for i in range(2):
        for T in range(7):
            acc = vr(ACC + 4 * (7 * i + T), 4)
            A(f"v_mfma_f32_16x16x32_bf16 {acc}, {ar(CS_A+4*T,4)}, {vr(232+4*i,4)}, {acc}")
    stamp(A, cfg, 33)
    for i in range(2):
        for T in range(7):
            for h in range(2):
                a = ACC + 4 * (7 * i + T) + 2 * h
                A(f"v_cvt_pk_bf16_f32 v{64+16*i+2*T+h}, v{a}, v{a+1}")
        for T in range(7):
            for h in range(2):
                A(f"v_pk_max_i16 v{64+16*i+2*T+h}, v{64+16*i+2*T+h}, 0")
        P = 64 + 16 * i
        def body(E):
            l15, le = A.label("c15"), A.label("ce")
            A(f"s_bitcmp1_b32 {sC}, 0\ns_cbranch_scc1 {l15}")
            for k in range(3): E(f"buffer_store_dwordx4 {vr(P+4*k,4)}, v2, {SWS}, s{66+i} offen offset:{k*1024}@")
            E(f"buffer_store_dwordx2 {vr(P+12,2)}, v2, {SWS}, s{66+i} offen offset:3072@")
            A(f"s_branch {le}\n{l15}:")
            E(f"buffer_store_dwordx2 {vr(P,2)}, v2, {SWS}, s{66+i} offen offset:{3072+8}@")
            E(f"buffer_store_dwordx4 {vr(P+2,4)}, v2, {SWS}, s{68+i} offen@")
            A(f"s_cmp_eq_u32 {sC}, 15\ns_cbranch_scc1 {le}")
            E(f"buffer_store_dwordx4 {vr(P+6,4)}, v2, {SWS}, s{68+i} offen offset:1024@")
            E(f"buffer_store_dwordx4 {vr(P+10,4)}, v2, {SWS}, s{68+i} offen offset:2048@")
            A(f"{le}:")
        either(A, body, "h1")
    stamp(A, cfg, 34)

def phase_D(A, cfg):
    ACC, HB = 8, 88
    A("; ---- phase D ----")
    lno, lo2, lw = A.label("noopt"), A.label("opt2"), A.label("optw")
    A(f"""
    s_lshr_b32 s62, {sC}, 1
    s_and_b32 s63, {sC}, 1
    s_lshl_b32 s64, {sR}, 3
    s_lshl_b32 s55, s63, 2
    s_add_u32 s64, s64, s55
    """)
    for i in range(4):
        A(f"""
        s_add_u32 s55, {sWAVE}, {i}
        s_and_b32 s55, s55, 3
        s_add_u32 s56, s55, s64
        s_mul_i32 s{66+i}, s56, 55296
        s_add_u32 s{66+i}, s{66+i}, s52
        s_add_u32 s{66+i}, s{66+i}, {H1F}
        s_mul_i32 s55, s55, 15360
        s_add_u32 s55, s55, {max(i-1,0)*5120}
        v_add_u32 v{240+i}, s55, v2
        """)
    A(f"""
    s_add_u32 s55, s64, {sWAVE}
    s_lshl_b32 s61, s55, 10
    s_add_u32 s61, s61, {STT}
    s_mul_i32 s60, s55, 20480
    s_mul_i32 s55, s62, 160
    s_add_u32 s60, s60, s55
    """)
    signal_group(A, 4, sR, sC, "h1", True)
    stamp(A, cfg, 40)
    for j in range(2):
        A(f"buffer_load_dwordx2 {vr(200+2*j,2)}, v5, {SWS}, s61 offen offset:{j*128}{cfg.ld}", "st")
    A.bg += w2_groups(49, 65)
    A.sprinkle(len(A.bg))
    A.cond += 1
    A(f"s_cmp_ge_u32 {sWAVE}, 2\ns_cbranch_scc1 {lw}")
    for t, tag in w2_groups(65, 70): A(t, tag)
    A(f"{lw}:")
    A.cond -= 1
    A.wait("st")
    A("v_add_f32 v200, v200, v202\nv_add_f32 v201, v201, v203")
    allreduce_16_32(A, [(200, 202), (201, 203)])
    stats_finish(A, 200, 201, 202)
    A("v_mov_b32 v5, v200")
    stamp(A, cfg, 41)
    wait_group(A, 4, sR)
    stamp(A, cfg, 42)
    def hload(st, i, slot):
        pre = f"s_add_u32 s55, s{66+i}, {(st//4)*4096}\n" if st >= 4 else ""
        A(pre + f"buffer_load_dwordx4 {vr(HB+4*slot,4)}, v2, {SWS}, {'s55' if st >= 4 else 's%d' % (66+i)} offen offset:{(st%4)*1024}{cfg.ld}", f"g{st}_{i}")
    def mm(st, i, slot, first=False, extra=None):
        for T in range(5):
            acc = vr(ACC + 4 * (5 * i + T), 4)
            A(f"v_mfma_f32_16x16x32_bf16 {acc}, {w2reg(st,T)}, {vr(HB+4*slot,4)}, {'0' if first else acc}")
            if extra: extra(T)
    HOLD = cfg.holdD
    order = []
    for st in range(13):
        order += [(st, i) for i in ((0, 1, 2, 3) if st < 13 - HOLD else (1, 2, 3))]
    n_opt = len(order)
    order += [(st, 0) for st in range(13 - HOLD, 13)]
    NS = 28
    W = cfg.aheadD
    for n in range(W): hload(*order[n], n % NS)
    wr = [(i, T) for i in (1, 2, 3) for T in range(5)]
    cnt = [0]
    addr = []
    addr += ["v_and_b32 v6, 15, v1", "v_lshrrev_b32 v7, 4, v1", "v_mul_u32_u24 v6, 176, v6", "v_lshl_add_u32 v6, v7, 3, v6",
             f"s_mul_i32 s56, {sWAVE}, 3072", "s_add_u32 s56, s56, 65536", "v_add_u32 v6, s56, v6"]
    for n, (st, i) in enumerate(order):
        if n == max(0, n_opt - W):
            A.cond += 1
            A(f"s_cmp_ge_u32 {sWAVE}, 2\ns_cbranch_scc1 {lno}")
            for ii in range(4): hload(13, ii, 28 + ii)
            A(f"{lno}:")
            A.cond -= 1
        if n == n_opt:
            A.cond += 1
            A(f"s_cmp_ge_u32 {sWAVE}, 2\ns_cbranch_scc1 {lo2}")
            A.wait("g13_3")
            for ii in (1, 2, 3, 0): mm(13, ii, 28 + ii)
            A(f"{lo2}:")
            A.cond -= 1
        A.wait(f"g{st}_{i}")
        def extra(T):
            if T == 1 and n + W < len(order): hload(*order[n + W], (n + W) % NS)
            if T == 3 and addr and n >= 4: A(addr.pop(0))
            if n >= n_opt:
                cnt[0] += 1
                if cnt[0] >= 3 and cnt[0] % cfg.wr_everyD == 0 and wr:
                    wi, wT = wr.pop(0)
                    A(f"ds_write_b128 v{240+wi}, {vr(ACC+4*(5*wi+wT),4)} offset:{wT*1024}")
        mm(st, i, n % NS, st == 0, extra)
    for wi, wT in wr: A(f"ds_write_b128 v{240+wi}, {vr(ACC+4*(5*wi+wT),4)} offset:{wT*1024}")
    stamp(A, cfg, 43)
    for it in range(3):
        A(f"""
        v_add_u32 v150, {it*64}, v1
        v_mul_u32_u24 v151, 6554, v150
        v_lshrrev_b32 v151, 16, v151
        v_mul_u32_u24 v152, 10, v151
        v_sub_u32 v152, v150, v152
        v_mul_u32_u24 v{154+it}, 176, v151
        v_lshl_add_u32 v{154+it}, v152, 4, v{154+it}
        v_add_u32 v{154+it}, s56, v{154+it}
        v_mul_u32_u24 v{158+it}, 1280, v151
        v_lshl_add_u32 v{158+it}, v152, 4, v{158+it}
        """)
    for i in range(10):
        A(f"v_lshlrev_b32 v{164+2*i}, 16, v{HK+i}\nv_and_b32 v{165+2*i}, 0xffff0000, v{HK+i}")
    A("v_mov_b32 v162, v5\ns_waitcnt lgkmcnt(0)\ns_barrier")
    for k in range(15): A(f"ds_read_b128 {vr(88+4*k,4)}, v240 offset:{k*1024}")
    for k in range(15):
        T = k % 5
        A(f"s_waitcnt lgkmcnt({14-k if k < 10 else 4})" if k <= 10 else f"s_waitcnt lgkmcnt(4)")
        A(f"v_pk_add_f32 {vr(ACC+4*T,2)}, {vr(ACC+4*T,2)}, {vr(88+4*k,2)}")
        A(f"v_pk_add_f32 {vr(ACC+4*T+2,2)}, {vr(ACC+4*T+2,2)}, {vr(90+4*k,2)}")
        if k >= 10:
            A(f"v_pk_fma_f32 {vr(ACC+4*T,2)}, {vr(ACC+4*T,2)}, v[162:163], {vr(164+4*T,2)} op_sel_hi:[1,0,1]")
            A(f"v_pk_fma_f32 {vr(ACC+4*T+2,2)}, {vr(ACC+4*T+2,2)}, v[162:163], {vr(166+4*T,2)} op_sel_hi:[1,0,1]")
            A(f"v_cvt_pk_bf16_f32 v{40+2*T}, v{ACC+4*T}, v{ACC+4*T+1}\nv_cvt_pk_bf16_f32 v{41+2*T}, v{ACC+4*T+2}, v{ACC+4*T+3}")
            A(f"ds_write_b64 v6, {vr(40+2*T,2)} offset:{T*32}")
    A("s_waitcnt lgkmcnt(0)")
    for it in range(3): A(f"ds_read_b128 {vr(52+4*it,4)}, v{154+it}")
    for it in range(3):
        A(f"s_waitcnt lgkmcnt({2-it})")
        if it == 2: A("s_mov_b64 exec, 0xffffffff")
        A(f"buffer_store_dwordx4 {vr(52+4*it,4)}, v{158+it}, {SOUT}, s60 offen")
    A("s_mov_b64 exec, -1")

def build(cfg):
    global NSMX
    NSMX = cfg.nsmx
    cfg.ld = {'sc1': ' sc1', 'plain': '', 'nt': ' nt', 'sc0': ' sc0'}.get(cfg.ld, cfg.ld)
    if cfg.mapB != "2x16": cfg.local = 0
    hdr = open("cdna_kernels/" + NAME + ".s.ref").read().split("; Override")[0]
    name = NAME + "_kernel"
    A = Asm()
    ex = "L_exit"
    A(f".text\n.globl {name}\n.p2align 8\n.type {name},@function\n{name}:")
    if cfg.stamps: A(f"v_mov_b32 v{STV}, 0\nv_mov_b32 v{STV+1}, 0")
    stamp(A, cfg, 0)
    prologue(A, cfg, ex)
    phase_P(A, cfg)
    phase_A(A, cfg)
    phase_B(A, cfg)
    phase_C(A, cfg)
    phase_D(A, cfg)
    epoch_advance(A)
    if getattr(cfg, "delay", 0):
        A(f"s_mov_b32 s90, 0\nL_dly:\n" + "v_add_u32 v8, v8, v8\n" * 16 + f"s_add_u32 s90, s90, 1\ns_cmp_lt_u32 s90, {cfg.delay}\ns_cbranch_scc1 L_dly")
    stamp(A, cfg, 62)
    stamp_flush(A, cfg)
    A(f"{ex}:\ns_endpgm")
    softmax_routine(A, NSMX)
    a_addresses(A)
    A(f"""
    .section .rodata,"a"
    .p2align 6
    .amdhsa_kernel {name}
    .amdhsa_next_free_vgpr 512
    .amdhsa_next_free_sgpr 100
    .amdhsa_accum_offset 256
    .amdhsa_group_segment_fixed_size 0
    .amdhsa_kernarg_size 80
    .amdhsa_user_sgpr_count 2
    .amdhsa_user_sgpr_kernarg_segment_ptr 1
    .amdhsa_system_sgpr_workgroup_id_x 1
    .end_amdhsa_kernel
    """)
    return hdr + "; @launch grid=(256,1,1) block=(256,1,1) lds=163840\n" + '.amdgcn_target "amdgcn-amd-amdhsa--gfx950"\n' + A.render()

def default_cfg():
    c = Cfg()
    c.ld = 'sc1'; c.local = 1; c.aheadA = 4; c.nsmx = 6; c.iv_k = 120; c.n_k = 2; c.p2sig = 12; c.iv_p2 = 110; c.n_p2 = 99
    c.n_q = 2; c.n_red = 6; c.n_h2 = 20; c.n_b = 6; c.n_h3 = 0; c.aheadB = 12; c.aheadC = 5; c.c_from = 7; c.iv_c = 200; c.n_c = 99
    c.aheadD = 12; c.holdD = 8; c.wr_everyD = 2
    return c

if __name__ == "__main__":
    cfg = default_cfg()
    for a in sys.argv[2:]:
        if "=" in a:
            k, v = a.split("=")
            setattr(cfg, k, int(v) if v.lstrip("-").isdigit() else v)
    cfg.stamps = "stamps" in sys.argv
    dst = sys.argv[1] if len(sys.argv) > 1 else "cdna_kernels/" + NAME + ".s"
    open(dst, "w").write(build(cfg))
    print("wrote", dst)
```

```python
import sys
sys.path.insert(0, "dev")
from asmlib import Asm

NAME = "sequential_preLN__linear_kernel_hedgehog__dense_activation_relu__prompt"

WQ  = 0
WO  = WQ + 2621440
W2  = WO + 819200
KVP = W2 + 2211840
OF  = KVP + 256 * 6784
HF  = OF + 2621440
H1F = HF + 2621440
W1  = H1F + 7077888
STT = W1 + 108 * 20480
CSQ = STT + 131072
CS1 = CSQ + 131072
CSJ = CS1 + 16 * 6912
FLG = (CSJ + 8192 + 4095) // 4096 * 4096
EPOCH = FLG + 7 * 8192
STAMP = 64 << 20
DBGA = 128 << 20
WS_BYTES = 268435456

SWS, SX, SOUT, SSRC, SW1 = "s[28:31]", "s[32:35]", "s[36:39]", "s[40:43]", "s[44:47]"
sWAVE, sR, sC, sNONCE, sRA, sCA = "s48", "s49", "s50", "s51", "s82", "s83"
sLOCAL = "s85"
SC = " sc1"
OUTPOL = {"p": "", "s": " sc1", "n": " nt", "t": " sc0 sc1"}
SPIN = 0x4000

class Cfg:
    stamps = False
    mapA = "8x4"
    mapB = "2x16"

def vr(b, n): return f"v[{b}:{b+n-1}]"
def ar(b, n): return f"a[{b}:{b+n-1}]"

def emit_map(A, kind, r, c):
    if kind == "2x16":
        A(f"s_lshl_b32 {r}, s52, 1\ns_and_b32 s54, s53, 1\ns_add_u32 {r}, {r}, s54\ns_lshr_b32 {c}, s53, 1")
    elif kind == "4x8":
        A(f"s_lshr_b32 {r}, s52, 1\ns_lshl_b32 {r}, {r}, 2\ns_and_b32 s54, s53, 3\ns_add_u32 {r}, {r}, s54")
        A(f"s_and_b32 {c}, s52, 1\ns_lshl_b32 {c}, {c}, 3\ns_lshr_b32 s54, s53, 2\ns_add_u32 {c}, {c}, s54")
    elif kind == "8x4":
        A(f"s_lshr_b32 {r}, s52, 2\ns_lshl_b32 {r}, {r}, 3\ns_and_b32 s54, s53, 7\ns_add_u32 {r}, {r}, s54")
        A(f"s_and_b32 {c}, s52, 3\ns_lshl_b32 {c}, {c}, 2\ns_lshr_b32 s54, s53, 3\ns_add_u32 {c}, {c}, s54")
    else:
        raise ValueError(kind)

def prologue(A, cfg, exit_label):
    A(f"""
    s_cmp_ge_u32 s2, 256
    s_cbranch_scc1 {exit_label}
    s_load_dwordx16 s[8:23], s[0:1], 0
    s_load_dwordx4 s[24:27], s[0:1], 64
    v_and_b32 v1, 63, v0
    v_lshrrev_b32 v2, 6, v0
    s_and_b32 s52, s2, 7
    s_lshr_b32 s53, s2, 3
    v_readfirstlane_b32 {sWAVE}, v2
    """)
    emit_map(A, cfg.mapB, sR, sC)
    emit_map(A, cfg.mapA, sRA, sCA)
    A(f"""
    v_lshlrev_b32 v2, 4, v1
    s_mov_b32 s30, {WS_BYTES}
    s_mov_b32 s31, 0x20000
    s_mov_b32 s34, 2621440
    s_mov_b32 s35, 0x20000
    s_mov_b32 s38, 2621440
    s_mov_b32 s39, 0x20000
    s_mov_b32 s43, 0x20000
    s_mov_b32 s46, {108*20480}
    s_mov_b32 s47, 0x20000
    s_mov_b32 s84, 0x3fb8aa3b
    s_mov_b32 s85, 0
    """)

def prologue2(A):
    A(f"""
    s_waitcnt lgkmcnt(0)
    s_mov_b32 s28, s26
    s_mov_b32 s29, s27
    s_mov_b32 s32, s8
    s_mov_b32 s33, s9
    s_mov_b32 s36, s22
    s_mov_b32 s37, s23
    s_add_u32 s44, s26, {W1}
    s_addc_u32 s45, s27, 0
    s_mov_b32 s56, {EPOCH}
    buffer_load_dword v7, off, {SWS}, s56 sc1
    """)

STV = 244
def stamp(A, cfg, k):
    if cfg.stamps:
        A(f"s_memrealtime s[94:95]\ns_memtime s[96:97]\ns_waitcnt lgkmcnt(0)\nv_writelane_b32 v{STV}, s94, {k}\nv_writelane_b32 v{STV+1}, s96, {k}")

def stamp_flush(A, cfg):
    if cfg.stamps:
        A(f"""
        s_waitcnt vmcnt(0)
        s_memrealtime s[94:95]
        s_waitcnt lgkmcnt(0)
        v_writelane_b32 v{STV}, s94, 63
        s_lshl_b32 s90, s2, 2
        s_add_u32 s90, s90, {sWAVE}
        s_lshl_b32 s90, s90, 8
        s_add_u32 s90, s90, {STAMP}
        v_lshlrev_b32 v5, 2, v1
        buffer_store_dword v{STV}, v5, {SWS}, s90 offen
        s_add_u32 s90, s90, {8<<20}
        buffer_store_dword v{STV+1}, v5, {SWS}, s90 offen
        """)
    if cfg.stamps and getattr(cfg, "dbgout", 0):
        l = A.label("dbo")
        sel = [1, 10, 11, 5, 6, 7, 12, 13, 17, 18, 21, 32, 33, 42, 43, 63]
        A(f"s_cmp_lg_u32 s2, {cfg.dbgout}\ns_cbranch_scc1 {l}\ns_cmp_lg_u32 {sWAVE}, 0\ns_cbranch_scc1 {l}")
        A(f"v_readlane_b32 s90, v{STV}, 0\nv_mov_b32 v8, 0")
        for i, k in enumerate(sel):
            A(f"v_readlane_b32 s91, v{STV}, {k}\ns_sub_u32 s91, s91, s90\nv_writelane_b32 v8, s91, {i}")
        A(f"s_mov_b64 exec, 0xffff\nglobal_store_dword v5, v8, s[24:25]\n{l}:")

def tag_ready(A):
    A(f"v_readfirstlane_b32 {sNONCE}, v7\ns_add_u32 {sNONCE}, {sNONCE}, 16\ns_and_b32 {sNONCE}, {sNONCE}, -16")

def epoch_advance(A):
    l = A.label("ep")
    A.cond += 1
    A(f"""
    s_or_b32 s55, s2, {sWAVE}
    s_cmp_lg_u32 s55, 0
    s_cbranch_scc1 {l}
    v_mov_b32 v6, 0
    v_mov_b32 v7, {sNONCE}
    s_mov_b32 s58, {EPOCH}
    s_mov_b64 exec, 1
    buffer_store_dword v7, v6, {SWS}, s58 offen sc1
    s_mov_b64 exec, -1
    {l}:
    """)
    A.cond -= 1

def either(A, lines, tag=None):
    A.cond += 1
    lines(lambda t: A(t.replace("@", " sc1"), tag))
    A.cond -= 1

def flag_store(A, val=None, local=False):
    A(f"""
    v_mov_b32 v6, s59
    v_mov_b32 v7, {val or sNONCE}
    s_mov_b64 exec, 1
    """)
    if local: either(A, lambda E: E(f"buffer_store_dword v7, v6, {SWS}, s58 offen@"))
    else: A(f"buffer_store_dword v7, v6, {SWS}, s58 offen sc1")
    A("s_mov_b64 exec, -1")

def signal_global(A, hop, fetch_nonce=False):
    l = A.label("sig")
    A.cond += 1
    A(f"s_cmp_lg_u32 {sWAVE}, 0\ns_cbranch_scc1 {l}")
    A(f"""
    s_lshr_b32 s58, s2, 2
    s_lshl_b32 s58, s58, 7
    s_add_u32 s58, s58, {FLG + hop*8192}
    s_and_b32 s59, s2, 3
    s_lshl_b32 s59, s59, 2
    """)
    flag_store(A)
    A(f"{l}:")
    A.cond -= 1

def poll_global(A, hop, R):
    lp, ld = A.label("poll"), A.label("pd")
    A(f"""
    v_lshlrev_b32 v6, 7, v1
    s_mov_b32 s58, {FLG + hop*8192}
    s_mov_b32 s57, 0
    {lp}:
    buffer_load_dwordx4 {vr(R,4)}, v6, {SWS}, s58 offen sc1
    s_add_u32 s57, s57, 1
    s_waitcnt vmcnt(0)
    v_xor_b32 v{R}, {sNONCE}, v{R}
    v_xor_b32 v{R+1}, {sNONCE}, v{R+1}
    v_xor_b32 v{R+2}, {sNONCE}, v{R+2}
    v_xor_b32 v{R+3}, {sNONCE}, v{R+3}
    v_or3_b32 v{R}, v{R}, v{R+1}, v{R+2}
    v_or_b32 v{R}, v{R}, v{R+3}
    v_cmp_ne_u32 vcc, 0, v{R}
    s_cmp_ge_u32 s57, {SPIN}
    s_cbranch_scc1 {ld}
    s_cbranch_vccnz {lp}
    {ld}:
    """)

def wait_global(A, hop, R):
    l = A.label("wt")
    A.cond += 1
    A(f"s_cmp_lg_u32 {sWAVE}, 0\ns_cbranch_scc1 {l}")
    poll_global(A, hop, R)
    A(f"{l}:")
    A.cond -= 1
    A("s_barrier")

def signal_group(A, hop, g, m, tag, local=False):
    l = A.label("sig")
    A.wait(tag)
    A("s_barrier")
    A.cond += 1
    A(f"""
    s_cmp_lg_u32 {sWAVE}, 0
    s_cbranch_scc1 {l}
    s_lshl_b32 s58, {g}, 7
    s_add_u32 s58, s58, {FLG + hop*8192}
    s_lshl_b32 s59, {m}, 2
    """)
    flag_store(A, None, local)
    A(f"{l}:")
    A.cond -= 1

def wait_group(A, hop, g):
    l, lp, ld = A.label("wt"), A.label("poll"), A.label("pd")
    A.cond += 1
    A(f"""
    s_cmp_lg_u32 {sWAVE}, 0
    s_cbranch_scc1 {l}
    s_lshl_b32 s58, {g}, 7
    s_add_u32 s58, s58, {FLG + hop*8192}
    v_lshlrev_b32 v6, 2, v1
    s_mov_b64 exec, 0xffff
    s_mov_b32 s57, 0
    {lp}:
    buffer_load_dword v7, v6, {SWS}, s58 offen sc1
    s_add_u32 s57, s57, 1
    s_waitcnt vmcnt(0)
    v_cmp_ne_u32 vcc, {sNONCE}, v7
    s_cmp_ge_u32 s57, {SPIN}
    s_cbranch_scc1 {ld}
    s_cbranch_vccnz {lp}
    {ld}:
    s_mov_b64 exec, -1
    {l}:
    """)
    A.cond -= 1
    A("s_barrier")


SIDE_LDS = 124 * 1024
SD, SDV, SDL, SDA, SDB = 210, 203, 204, 206, 208
SSRC_OFF = (8, 9, 10, 11, 12)
def side_params(A):
    lwo, le = A.label("swo"), A.label("send")
    A(f"""
    v_bfe_u32 v{SDA}, v1, 3, 2
    v_lshrrev_b32 v207, 5, v1
    s_cmp_ge_u32 s65, 864
    s_cbranch_scc1 {lwo}
    s_cmp_lt_u32 s65, 432
    s_cselect_b32 s40, s18, s20
    s_cselect_b32 s41, s19, s21
    s_mov_b32 s42, 2211840
    s_mov_b32 s60, 1280
    s_cselect_b32 s60, 3456, s60
    s_mov_b32 s71, 55296
    s_cselect_b32 s71, 20480, s71
    s_cselect_b32 s55, 0, 432
    s_mov_b32 s56, 19419
    s_cselect_b32 s56, 52429, s56
    s_mov_b32 s57, 216
    s_cselect_b32 s57, 80, s57
    s_mov_b32 s73, {W2}
    s_cselect_b32 s73, {W1}, s73
    s_sub_u32 s74, s65, s55
    s_and_b32 s58, s74, 15
    s_mul_i32 s58, s58, 6912
    s_lshr_b32 s59, s74, 4
    s_lshl_b32 s59, s59, 8
    s_add_u32 s58, s58, s59
    s_add_u32 s72, s58, {CS1}
    s_mul_i32 s74, s74, 5
    v_lshl_add_u32 v{SDA}, v207, 4, v{SDA}
    v_mad_u32_u24 v{SDA}, v{SDA}, s60, v205
    v_mov_b32 v{SDB}, v{SDA}
    s_lshl_b32 s75, s71, 2
    s_lshl_b32 s60, s60, 2
    """)
    for i in range(5):
        A(f"""
        s_mul_i32 s58, s74, s56
        s_lshr_b32 s58, s58, 22
        s_mul_i32 s59, s58, s57
        s_sub_u32 s59, s74, s59
        s_mul_i32 s{66+i}, s58, s75
        s_lshl_b32 s55, s59, 8
        s_add_u32 s55, s55, s73
        s_add_u32 s{66+i}, s{66+i}, s55
        s_and_b32 s55, s59, 3
        s_lshr_b32 s59, s59, 2
        s_lshl3_add_u32 s59, s59, s55
        s_mul_i32 s59, s59, s60
        s_lshl_b32 s58, s58, 7
        s_add_u32 s{SSRC_OFF[i]}, s59, s58
        s_add_u32 s74, s74, 1
        """)
    A(f"""
    s_branch {le}
    {lwo}:
    s_mov_b32 s40, s14
    s_mov_b32 s41, s15
    s_mov_b32 s42, 819200
    s_mov_b32 s71, 20480
    s_sub_u32 s74, s65, 864
    s_lshr_b32 s58, s74, 4
    s_and_b32 s59, s74, 15
    s_mul_i32 s66, s58, {4*20480}
    s_mul_i32 s55, s59, 1280
    s_add_u32 s66, s66, s55
    s_add_u32 s66, s66, {WO}
    s_lshr_b32 s55, s59, 1
    s_mul_i32 s8, s55, {80*1280}
    s_and_b32 s55, s59, 1
    s_mul_i32 s55, s55, {20*1280}
    s_add_u32 s8, s8, s55
    s_lshl_b32 s58, s58, 7
    s_add_u32 s8, s8, s58
    v_mul_u32_u24 v{SDA}, 1280, v{SDA}
    v_add_u32 v{SDA}, v{SDA}, v205
    v_mul_u32_u24 v207, 5120, v207
    v_mad_u32_u24 v{SDB}, v207, 6, v{SDA}
    v_add_u32 v{SDA}, v{SDA}, v207
    """)
    for i, r0 in enumerate((0, 8, 16, 44, 52)):
        if i: A(f"s_add_u32 s{SSRC_OFF[i]}, s8, {r0*1280}\ns_add_u32 s{66+i}, s66, {256*i}")
    A(f"""
    {le}:
    v_lshrrev_b32 v207, 4, v1
    v_and_b32 v{SDL}, 15, v1
    v_lshlrev_b32 v{SDL}, 4, v{SDL}
    v_mad_u32_u24 v{SDV}, v207, s71, v{SDL}
    v_lshlrev_b32 v{SDL}, 2, v1
    s_add_u32 s55, s64, {9*16384}
    v_add_u32 v207, s55, v2
    """)

def side_loads(A):
    for i in range(5):
        A(f"buffer_load_dwordx4 {vr(SD+4*i,4)}, v{SDB if i == 2 else SDA}, {SSRC}, s{SSRC_OFF[i]} offen", "side")

def side_process(A):
    l = A.label("nocs")
    A.wait("side")
    for grp in ((0, 1, 2, 3), (4,)):
        for g in grp: A(f"ds_write_b128 v207, {vr(SD+4*g,4)} offset:{(g%4)*1024}")
        A("s_waitcnt lgkmcnt(0)")
        for g in grp:
            A(f"ds_read_b64_tr_b16 v[{SD+4*g}:{SD+1+4*g}], v5 offset:{(g%4)*1024}")
            A(f"ds_read_b64_tr_b16 v[{SD+2+4*g}:{SD+3+4*g}], v5 offset:{(g%4)*1024+512}")
        for n, g in enumerate(grp):
            A(f"s_waitcnt lgkmcnt({2*(len(grp)-1-n)})")
            A(f"buffer_store_dwordx4 {vr(SD+4*g,4)}, v{SDV}, {SWS}, s{66+g} offen{SC}")
    A.cond += 1
    A(f"s_cmp_ge_u32 s65, 432\ns_cbranch_scc1 {l}\nv_mov_b32 v176, 0\nv_mov_b32 v177, 0")
    for k in range(20): A(f"v_dot2c_f32_bf16 v{176+k%2}, s79, v{SD+k}")
    A(f"v_add_f32 v176, v176, v177\nbuffer_store_dword v176, v{SDL}, {SWS}, s72 offen{SC}\n{l}:")
    A.cond -= 1

def allreduce_16_32(A, pairs):
    for sw in ("v_permlane16_swap_b32", "v_permlane32_swap_b32"):
        for v, t in pairs: A(f"v_mov_b32 v{t}, v{v}")
        for v, t in pairs: A(f"{sw} v{v}, v{t}")
        for v, t in pairs: A(f"v_add_f32 v{v}, v{v}, v{t}")

def stats_finish(A, vs, vq, vt):
    A(f"""
    v_mul_f32 v{vs}, 0x3acccccd, v{vs}
    v_mul_f32 v{vq}, 0x3acccccd, v{vq}
    v_fma_f32 v{vt}, -v{vs}, v{vs}, v{vq}
    v_max_f32 v{vt}, 0, v{vt}
    v_add_f32 v{vt}, 0x3727c5ac, v{vt}
    v_rsq_f32 v{vt}, v{vt}
    v_mul_f32 v{vq}, -v{vs}, v{vt}
    v_mov_b32 v{vs}, v{vt}
    """)


WM, WLf = 8, 20
ACK, ACV, ACL, ACQ = 32, 48, 64, 80
CSF = 96
U = 112
PP, PL = 124, 140
EP, EN = 156, 176
PH = 196
VV = 156
QL = 216
TM = 218
RSTD, LSC, MF = 230, 232, 236
aPKW, aTRA0, aTRA1, aTRB0, aTRB1, aKVS, aKVL, aKVF, aOST, aZ = range(246, 256)
aKVF2, aHW, aHR, aWM, aWL, aGRP = 234, 235, 240, 241, 242, 243
LOC_LDS = 87 * 1024
PKV_LDS = 88 * 1024
KVF_LDS = 150 * 1024
HOLE_LDS = 120 * 1024
HOLE2_LDS = 158 * 1024
XR, WO25, HK = 230, 240, 246
WA0, WA1 = 160, 208

XSLOT = [0, 1, 2, 3, 4, 5, 6, 7, 8, 9]
def x_reads(A, chunks):
    todo = [(4 * j + sp, sp, XSLOT[j] * 16384) for j in chunks for sp in range(4)]
    n = len(todo)
    cur = 0
    for k, (s, sp, o) in enumerate(todo):
        win = o >> 16
        if win and win != cur:
            for q in range(4): A(f"v_add_u32 v{116+q}, {win << 16}, v{112+q}")
        if win: cur = win
        b = (116 if win else 112) + sp
        A(f"ds_read_b128 {vr(124+4*(k%16),4)}, v{b} offset:{o & 0xffff}")
        A(f"ds_read_b128 {ar(4*s,4)}, v{b} offset:{o & 0xffff}")
        if k % 4 == 3 and k >= 7:
            A("s_waitcnt lgkmcnt(8)")
            for kk in range(k - 7, k - 3): x_stats(A, 124 + 4 * (kk % 16))
    A("s_waitcnt lgkmcnt(0)")
    for kk in range(n - 4, n): x_stats(A, 124 + 4 * (kk % 16))

def x_stats(A, R):
    for j in range(4):
        A(f"v_dot2c_f32_bf16 v{120+2*(j%2)}, s79, v{R+j}")
        A(f"v_dot2c_f32_bf16 v{121+2*(j%2)}, v{R+j}, v{R+j}")

def split_hi_lo(A, src, hi, lo, t):
    A(f"""
    v_cvt_pk_bf16_f32 v{hi}, v{src}, 0
    v_lshlrev_b32 v{t}, 16, v{hi}
    v_sub_f32 v{t}, v{src}, v{t}
    v_cvt_pk_bf16_f32 v{lo}, v{t}, 0
    """)

def phase_P(A, cfg):
    lF = A.label("fl")
    A(f"""
    v_lshrrev_b32 v3, 3, v1
    v_and_b32 v4, 7, v1
    s_mov_b32 s79, 0x3f803f80
    s_lshl_b32 s64, {sWAVE}, 12
    v_and_b32 v8, 15, v1
    v_min_u32 v8, 14, v8
    v_mul_u32_u24 v9, 52, v8
    v_lshrrev_b32 v9, 8, v9
    v_mul_u32_u24 v9, {1280 - 80}, v9
    v_lshl_add_u32 v8, v8, 4, v9
    v_lshrrev_b32 v10, 4, v1
    s_mul_i32 s55, {sWAVE}, 12
    v_add_u32 v9, s55, v10
    s_mul_i32 s61, {sRA}, {40*3840}
    s_mul_i32 s55, {sCA}, 80
    s_add_u32 s61, s61, s55
    s_mul_i32 s55, {sWAVE}, 3072
    s_add_u32 m0, s55, 147456
    s_mov_b32 s42, 2457600
    s_movk_i32 s56, 3840
    """)
    for i in range(3):
        A(f"v_add_u32 v11, {4*i}, v9\nv_min_u32 v11, 39, v11\nv_mad_u32_u24 v{17+i}, v11, s56, v8")
    A(f"""
    v_xor_b32 v94, v4, v10
    v_mul_u32_u24 v95, 1280, v3
    v_lshl_add_u32 v94, v94, 4, v95
    v_xor_b32 v95, 64, v94
    s_lshl_b32 s77, {sRA}, 2
    s_add_u32 s77, s77, {sWAVE}
    s_mul_i32 s77, s77, {32*1280}
    s_lshr_b32 s78, s2, {dict([("8x4", 6), ("4x8", 5), ("2x16", 4)])[cfg.mapA]}
    s_mul_i32 s78, s78, {10 * cfg.rot}
    s_lshr_b32 s78, s78, {dict([("8x4", 2), ("4x8", 3), ("2x16", 4)])[cfg.mapA]}
    s_lshl_b32 s63, s78, 7
    """)
    prologue2(A)
    A("s_mov_b32 s40, s10\ns_mov_b32 s41, s11")
    for i in range(3):
        A(f"buffer_load_dwordx4 v{17+i}, {SSRC}, s61 offen offset:0 lds" if i == 0 else f"s_add_u32 m0, m0, 1024\ns_nop 0\nbuffer_load_dwordx4 v{17+i}, {SSRC}, s61 offen lds", "crit")
    def PREP():
        A(f"""
    v_bfe_u32 v17, v1, 2, 2
    v_lshrrev_b32 v18, 5, v1
    v_lshl_add_u32 v17, v18, 3, v17
    v_lshlrev_b32 v17, 8, v17
    v_bfe_u32 v19, v1, 4, 1
    v_bfe_u32 v20, v1, 1, 1
    v_lshl_add_u32 v19, v19, 1, v20
    v_and_b32 v20, 1, v1
    v_mul_u32_u24 v20, 40, v20
    v_add_u32 v17, v17, v20
    s_add_u32 s55, {sWAVE}, 1
    s_and_b32 s55, s55, 3
    s_mul_i32 s55, s55, 80
    v_lshl_add_u32 v21, v19, 3, s55
    v_min_u32 v19, 2, v19
    v_mul_u32_u24 v22, 80, v19
    v_add_u32 v22, 32, v22
    s_cmp_eq_u32 {sWAVE}, 2
    s_cselect_b64 vcc, -1, 0
    v_cndmask_b32 v21, v21, v22, vcc
    v_add_u32 v21, v17, v21
    v_add_u32 v21, 147456, v21
    v_and_b32 v19, 31, v1
    v_lshlrev_b32 v23, 2, v19
    v_lshlrev_b32 v19, 4, v19
    s_lshl_b32 s86, {sWAVE}, 10
    s_mov_b32 s87, 3072
    s_cmp_eq_u32 {sWAVE}, 3
    s_cselect_b32 s86, 122880, s86
    s_cselect_b32 s87, 1024, s87
    s_mul_i32 s55, {sCA}, 163840
    s_add_u32 s86, s86, s55
    s_lshl_b32 s90, {sCA}, 4
    s_add_u32 s90, s90, {sRA}
    s_lshl_b32 s90, s90, 2
    s_add_u32 s90, s90, {sWAVE}
    s_lshl_b32 s90, s90, 7
    s_add_u32 s90, s90, {CSQ}
    s_mul_i32 s55, {sRA}, 5
    v_add_u32 v18, s55, v18
    """)
        for i in range(3):
            A(f"""
        v_add_u32 v20, {2*i}, v18
        v_and_b32 v22, 1, v20
        v_lshl_add_u32 v22, v22, 9, v19
        v_lshrrev_b32 v20, 1, v20
        v_mad_u32_u24 v{24+i}, v20, s87, v22
        """)
        A(f"""
    v_lshrrev_b32 v12, 4, v1
    v_and_b32 v27, 3, v1
    v_lshlrev_b32 v27, 3, v27
    v_lshl_add_u32 v27, v12, 5, v27
    v_bfe_u32 v28, v1, 3, 1
    v_lshlrev_b32 v28, 6, v28
    v_xor_b32 v27, v27, v28
    v_bfe_u32 v28, v1, 2, 2
    v_lshl_add_u32 v5, v28, 7, v27
    s_add_u32 s55, s64, {9*16384}
    v_add_u32 v5, s55, v5
    v_mov_b32 v56, 0
    v_mov_b32 v57, 0
    """)
    def xchunk(j, tag):
        A(f"s_add_u32 m0, s64, {XSLOT[j]*16384}\ns_add_u32 s61, s77, s63")
        for i in range(4):
            A(f"buffer_load_dwordx4 v{94 + i % 2}, {SX}, s61 offen lds", tag)
            if i < 3: A(f"s_add_u32 m0, m0, 1024\ns_add_u32 s61, s61, {8*1280}")
        A("s_add_u32 s63, s63, 128\ns_cmp_eq_u32 s63, 1280\ns_cselect_b32 s63, 0, s63")
    A(f"""
    s_mov_b32 s40, s12
    s_mov_b32 s41, s13
    s_mov_b32 s42, 25600
    s_mul_i32 s61, {sCA}, 1600
    s_mov_b32 m0, 159744
    v_mov_b32 v32, 0
    v_mov_b32 v33, 0
    v_mov_b32 v34, 0
    v_mov_b32 v35, 0
    v_add_u32 v36, 161792, v2
    """)
    A(f"buffer_load_dwordx4 v2, {SSRC}, s61 offen lds\nbuffer_load_dwordx4 v2, {SSRC}, s61 offen offset:1024 lds", "crit")
    for j in range(cfg.x_first): xchunk(j, f"x{j}")
    if cfg.cpf:
        A(f"""
        s_getpc_b64 s[56:57]
        L_pc:
        s_sub_u32 s56, s56, L_pc - {NAME}_kernel
        s_subb_u32 s57, s57, 0
        s_lshr_b32 s55, s2, 3
        s_lshl_b32 s55, s55, 2
        s_add_u32 s55, s55, {sWAVE}
        s_lshl_b32 s55, s55, 9
        v_lshl_add_u32 v37, v1, 3, s55
        v_min_u32 v37, L_end - {NAME}_kernel - 4, v37
        global_load_dword v209, v37, s[56:57]
        """)
    A(f"""
    ds_write_b128 v36, v[32:35]
    v_and_b32 v10, 1, v10
    v_lshlrev_b32 v10, 2, v10
    v_xor_b32 v4, v4, v10
    v_lshlrev_b32 v205, 4, v4
    s_lshl_b32 s65, s2, 2
    s_add_u32 s65, s65, {sWAVE}
    """)
    a_addresses(A)
    side_params(A)
    if cfg.side_at == 0: side_loads(A)
    PREP()
    stamp(A, cfg, 1)
    A.wait("crit", "lgkmcnt(0)")
    A("s_barrier")
    tag_ready(A)
    stamp(A, cfg, 10)
    for i in range(3):
        R = 32 + 4 * i
        A(f"ds_read_b64_tr_b16 v[{R}:{R+1}], v21 offset:{16*i*256}")
        A(f"ds_read_b64_tr_b16 v[{R+2}:{R+3}], v21 offset:{(16*i+4)*256}")
    for i in range(3):
        if i == 2: A("s_mov_b64 exec, 0xffffffff")
        A(f"s_waitcnt lgkmcnt({4 - 2*i})")
        A(f"buffer_store_dwordx4 v[{32+4*i}:{35+4*i}], v{24+i}, {SWS}, s86 offen{SC}", "cst")
    for i in (2, 0, 1):
        for j in range(4): A(f"v_dot2c_f32_bf16 v{56+j%2}, s79, v{32+4*i+j}")
        if i == 2: A("s_mov_b64 exec, -1")
    A("""
    v_add_f32 v56, v56, v57
    v_mov_b32 v58, v56
    v_permlane32_swap_b32 v56, v58
    v_add_f32 v56, v56, v58
    s_mov_b64 exec, 0xffffffff
    """)
    A(f"buffer_store_dword v56, v23, {SWS}, s90 offen{SC}", "cst")
    A("s_mov_b64 exec, -1")
    stamp(A, cfg, 2)
    for j in range(cfg.x_first, cfg.x_mid): xchunk(j, f"x{j}")
    if cfg.side_at == 1: side_loads(A)
    for d in range(20):
        op = "ds_read_u16_d16_hi" if d % 2 else "ds_read_u16"
        A(f"{op} v{156 + d}, v{aWM} offset:{d*40}\n{op} v{176 + d}, v{aWL} offset:{d*40}")
    A("s_waitcnt lgkmcnt(0)")
    for i in range(10): A(f"v_or_b32 v{WM+i}, v{156+2*i}, v{157+2*i}\nv_or_b32 v{WLf+i}, v{176+2*i}, v{177+2*i}")
    for r in (WM+10, WM+11, WLf+10, WLf+11): A(f"v_mov_b32 v{r}, 0")
    A.wait("cst")
    stamp(A, cfg, 11)
    A("s_barrier")
    A.cond += 1
    A(f"""
    s_cmp_lg_u32 {sWAVE}, 0
    s_cbranch_scc1 {lF}
    s_lshl_b32 s58, {sCA}, 7
    s_add_u32 s58, s58, {FLG}
    s_lshl_b32 s59, {sRA}, 2
    """)
    flag_store(A)
    A(f"{lF}:")
    A.cond -= 1
    stamp(A, cfg, 3)
    for j in range(cfg.x_mid, cfg.x_late): xchunk(j, f"x{j}")
    A.wait("x2")
    x_reads(A, [0, 1, 2])
    for j in range(cfg.x_late, 9): xchunk(j, f"x{j}")
    side_process(A)
    xchunk(9, "x9")
    stamp(A, cfg, 4)
    A.wait("x6")
    x_reads(A, [3, 4, 5, 6])
    A.wait("x9")
    stamp(A, cfg, 5)
    x_reads(A, [7, 8, 9])
    A(f"""
    v_add_f32 v120, v120, v122
    v_add_f32 v121, v121, v123
    v_mov_b32 v122, v120
    v_mov_b32 v123, v121
    v_permlane32_swap_b32 v120, v122
    v_permlane32_swap_b32 v121, v123
    v_add_f32 v120, v120, v122
    v_add_f32 v121, v121, v123
    v_mul_f32 v120, 0xbacccccd, v120
    v_mul_f32 v121, 0x3acccccd, v121
    v_fma_f32 v122, -v120, v120, v121
    v_max_f32 v122, 0, v122
    v_add_f32 v122, 0x3727c5ac, v122
    v_rsq_f32 v{RSTD}, v122
    """)
    split_hi_lo(A, 120, 122, MF + 1, 123)
    A(f"""
    v_mul_f32 v{LSC}, s84, v{RSTD}
    v_lshl_or_b32 v{MF}, v122, 16, v122
    v_mov_b32 v{MF+2}, 0
    v_mov_b32 v{MF+3}, 0
    s_mov_b32 exec_lo, 0
    v_mov_b32 v{MF}, 0
    v_mov_b32 v{MF+1}, 0
    s_mov_b64 exec, -1
    v_add_u32 v3, 0x10000, v2
    v_add_u32 v4, 0x20000, v2
    """)
    stamp(A, cfg, 6)
    wait_group(A, 0, sCA)
    signal_global(A, 5)

def a_addresses(A):
    A(f"""
    v_and_b32 v192, 31, v1
    v_lshrrev_b32 v193, 5, v1
    s_lshl_b32 s90, {sWAVE}, 5
    v_add_u32 v194, s90, v192
    v_lshl_add_u32 v194, v193, 7, v194
    v_lshlrev_b32 v194, 7, v194
    v_add_u32 v194, {PKV_LDS}, v194
    v_bfe_u32 v195, v1, 1, 1
    v_lshlrev_b32 v195, 2, v195
    v_bfe_u32 v196, v1, 2, 1
    v_lshl_add_u32 v195, v196, 1, v195
    v_and_b32 v196, 1, v1
    v_add_u32 v195, v195, v196
    v_lshl_add_u32 v{aPKW}, v195, 4, v194
    v_mul_u32_u24 v194, 336, v193
    v_lshl_add_u32 v{aKVS}, v192, 4, v194
    s_lshr_b32 s90, {sWAVE}, 1
    s_and_b32 s6, {sWAVE}, 1
    s_lshl_b32 s86, s90, 14
    s_add_u32 s86, s86, {PKV_LDS}
    v_bfe_u32 v192, v1, 2, 2
    v_lshl_add_u32 v192, v193, 3, v192
    v_lshlrev_b32 v192, 7, v192
    v_add_u32 v192, s86, v192
    v_and_b32 v194, 1, v1
    v_lshl_add_u32 v192, v194, 3, v192
    v_bfe_u32 v194, v1, 4, 1
    v_bfe_u32 v195, v1, 1, 1
    v_lshl_add_u32 v194, v194, 1, v195
    v_bfe_u32 v195, v1, 3, 1
    v_lshlrev_b32 v195, 2, v195
    v_bfe_u32 v196, v1, 2, 1
    v_add_u32 v195, v195, v196
    s_lshl_b32 s87, s6, 2
    v_add_u32 v196, s87, v194
    v_add_u32 v197, 5, v194
    v_min_u32 v197, 7, v197
    v_xor_b32 v196, v196, v195
    v_xor_b32 v197, v197, v195
    v_lshl_add_u32 v{aTRA0}, v196, 4, v192
    v_lshl_add_u32 v{aTRB0}, v197, 4, v192
    v_xor_b32 v196, 2, v196
    v_xor_b32 v197, 2, v197
    v_lshl_add_u32 v{aTRA1}, v196, 4, v192
    v_lshl_add_u32 v{aTRB1}, v197, 4, v192
    s_lshl_b32 s3, {sCA}, 4
    s_add_u32 s3, s3, {sRA}
    s_mul_i32 s3, s3, 6784
    s_mul_i32 s87, s90, 3360
    s_add_u32 s3, s3, s87
    s_mul_i32 s87, s6, {8*336}
    s_add_u32 s3, s3, s87
    s_add_u32 s3, s3, {KVP}
    v_lshlrev_b32 v{aKVL}, 4, v0
    """)
    for rnd, dst in ((0, aKVF), (1, aKVF2)):
        A(f"""
        v_add_u32 v199, {256*rnd}, v0
        v_mul_u32_u24 v192, 3121, v199
        v_lshrrev_b32 v192, 16, v192
        v_mul_u32_u24 v193, 21, v192
        v_sub_u32 v193, v199, v193
        v_cmp_le_u32 s[90:91], 10, v192
        v_subrev_u32 v195, 10, v192
        v_cndmask_b32 v195, v192, v195, s[90:91]
        v_cndmask_b32 v196, 0, 1, s[90:91]
        v_and_b32 v194, 1, v195
        v_lshrrev_b32 v195, 1, v195
        v_lshrrev_b32 v197, 4, v193
        v_and_b32 v198, 15, v193
        v_mad_u32_u24 v195, v197, 5, v195
        v_lshlrev_b32 v195, 10, v195
        v_lshl_add_u32 v195, v194, 3, v195
        v_lshrrev_b32 v197, 2, v198
        v_lshlrev_b32 v197, 3, v197
        v_and_b32 v198, 3, v198
        v_add_u32 v197, v197, v198
        v_mad_u32_u24 v197, v196, 36, v197
        v_lshl_add_u32 v195, v197, 4, v195
        v_add_u32 v{dst}, {KVF_LDS}, v195
        """)
    A(f"""
    s_mul_i32 s4, {sCA}, {16*6784}
    s_add_u32 s4, s4, {KVP}
    v_and_b32 v192, 15, v1
    v_bfe_u32 v193, v1, 4, 1
    v_lshrrev_b32 v194, 5, v1
    v_mul_u32_u24 v193, 20480, v193
    v_mul_u32_u24 v194, 1280, v194
    v_lshl_add_u32 v192, v192, 4, v193
    v_add_u32 v{aOST}, v192, v194
    s_lshl_b32 s5, {sRA}, 2
    s_add_u32 s5, s5, {sWAVE}
    s_mul_i32 s5, s5, 40960
    s_lshr_b32 s90, {sCA}, 1
    s_mul_i32 s90, s90, 2560
    s_add_u32 s5, s5, s90
    s_add_u32 s5, s5, {OF}
    v_mul_u32_u24 v{aZ}, 40, v0
    v_add_u32 v{aZ}, {KVF_LDS}, v{aZ}
    s_mul_i32 s53, {sCA}, 163840
    s_lshl_b32 s7, {sWAVE}, 10
    s_add_u32 s53, s53, s7
    s_add_u32 s53, s53, {WQ}
    s_sub_u32 s101, s53, s7
    s_add_u32 s101, s101, 122880
    s_lshl_b32 s90, s78, 12
    s_add_u32 s100, s53, s90
    s_add_u32 s100, s100, 122880
    s_mul_i32 s90, s78, 12288
    s_add_u32 s53, s53, s90
    s_lshl_b32 s54, {sCA}, 13
    s_add_u32 s54, s54, {CSQ}
    s_lshl_b32 s90, {sWAVE}, 11
    s_add_u32 s54, s54, s90
    s_lshl_b32 s90, {sWAVE}, 9
    s_add_u32 s90, s90, {HOLE_LDS}
    v_and_b32 v192, 31, v1
    v_lshlrev_b32 v{aHW}, 4, v192
    v_add_u32 v{aHW}, s90, v{aHW}
    v_lshlrev_b32 v{aHR}, 2, v192
    v_add_u32 v{aHR}, {HOLE_LDS}, v{aHR}
    s_mul_i32 s88, {sC}, {7*20480}
    s_add_u32 s88, s88, s7
    s_mov_b32 s89, s7
    s_lshr_b32 s90, {sC}, 1
    s_mul_i32 s92, s90, {5*20480}
    s_mul_i32 s91, {sWAVE}, 5120
    s_add_u32 s92, s92, s91
    s_add_u32 s92, s92, {WO}
    s_mul_i32 s52, {sWAVE}, 14
    s_cmp_eq_u32 {sWAVE}, 3
    s_cselect_b32 s52, 41, s52
    s_lshl_b32 s52, s52, 10
    s_mul_i32 s93, s90, {5*55296}
    s_add_u32 s93, s93, s52
    s_add_u32 s93, s93, {W2}
    
    v_and_b32 v116, 31, v1
    v_lshrrev_b32 v117, 5, v1
    v_bfe_u32 v118, v1, 1, 3
    v_xor_b32 v117, v117, v118
    v_lshlrev_b32 v116, 7, v116
    v_add_u32 v116, s64, v116
    v_lshl_add_u32 v112, v117, 4, v116
    v_xor_b32 v113, 32, v112
    v_xor_b32 v114, 64, v112
    v_xor_b32 v115, 96, v112
    v_mov_b32 v120, 0
    v_mov_b32 v121, 0
    v_mov_b32 v122, 0
    v_mov_b32 v123, 0
    v_and_b32 v192, 31, v1
    v_lshrrev_b32 v193, 5, v1
    v_bfe_u32 v194, v1, 2, 1
    v_lshrrev_b32 v195, 3, v192
    v_and_b32 v196, 3, v1
    v_lshl_add_u32 v195, v195, 2, v196
    v_mul_u32_u24 v196, 800, v193
    v_lshl_add_u32 v196, v195, 1, v196
    v_mov_b32 v197, 2048
    v_cmp_eq_u32 s[90:91], v193, v194
    v_add_u32 v198, 32, v196
    v_cndmask_b32 v196, v197, v196, s[90:91]
    v_cndmask_b32 v198, v197, v198, s[90:91]
    v_cmp_gt_u32 s[90:91], 8, v192
    s_mov_b32 s86, 159744
    v_add_u32 v{aWM}, s86, v196
    v_cndmask_b32 v198, v197, v198, s[90:91]
    v_add_u32 v{aWL}, s86, v198
    """)

W1G = f"s_mov_b32 m0, s89\ns_add_u32 s89, s89, 4096\nbuffer_load_dwordx4 v2, {SW1}, s88 offen{SC} lds\ns_add_u32 s88, s88, 4096"

def woreg(T, st):
    k = 5 * T + st
    return ar(160 + 4 * k, 4) if k < 24 else vr(WO25, 4)
def wo_groups():
    g = []
    for T in range(5):
        for st in range(5):
            pre = f"s_add_u32 s98, s92, {T*20480 + (st//4)*4096}\n" if st % 4 == 0 else ""
            g.append((pre + f"buffer_load_dwordx4 {woreg(T,st)}, v2, {SWS}, s98 offen offset:{(st%4)*1024}{SC}", "wo"))
    return g
def w2reg(step, T):
    k = step * 5 + T
    return ar(4 * k, 4) if k < 64 else vr(216 + 4 * (k - 64), 4)
def w2_groups(k0, k1):
    items = sorted(((k % 5, k // 5) for k in range(k0, k1)), key=lambda e: (e[1] // 2, e[0], e[1]))
    g = []; cur = None
    for T, st in items:
        key = (T, st // 4)
        pre = f"s_add_u32 s99, s93, {T*55296 + (st//4)*4096}\n"
        cur = key
        g.append((pre + f"buffer_load_dwordx4 {w2reg(st,T)}, v2, {SWS}, s99 offen offset:{(st%4)*1024}{SC}", f"w2_{st//2}"))
    return g

def softmax_routine(A, ndma):
    A("L_smx:\ns_nop 1")
    body = []
    B = body.append
    for u in range(3):
        A(f"v_mfma_f32_32x32x16_bf16 {vr(PP,16)}, {vr(WM+4*u,4)}, {vr(U+4*u,4)}, {'0' if u==0 else vr(PP,16)}")
    for u in range(3):
        A(f"v_mfma_f32_32x32x16_bf16 {vr(PL,16)}, {vr(WLf+4*u,4)}, {vr(U+4*u,4)}, {'0' if u==0 else vr(PL,16)}")
    def site():
        l = A.label('ns')
        A(W1G)
    site()
    p = [PP + i for i in range(20)]
    for k in range(4):
        B(f"v_max3_f32 v{TM+k}, v{p[4*k]}, v{p[4*k+1]}, v{p[4*k+2]}")
        B(f"v_min3_f32 v{TM+4+k}, v{p[4*k]}, v{p[4*k+1]}, v{p[4*k+2]}")
    for k in range(4):
        B(f"v_max3_f32 v{TM+k}, v{TM+k}, v{p[4*k+3]}, v{p[16+k]}")
        B(f"v_min3_f32 v{TM+4+k}, v{TM+4+k}, v{p[4*k+3]}, v{p[16+k]}")
    B(f"v_max3_f32 v{TM}, v{TM}, v{TM+1}, v{TM+2}")
    B(f"v_min3_f32 v{TM+4}, v{TM+4}, v{TM+5}, v{TM+6}")
    B(f"v_max_f32 v{TM}, v{TM}, v{TM+3}")
    B(f"v_min_f32 v{TM+4}, v{TM+4}, v{TM+7}")
    B(f"v_mul_f32 v{TM+8}, v{LSC}, v{TM}")
    B(f"v_mul_f32 v{TM+10}, v{LSC}, v{TM+4}")
    for i in range(0, 20, 2):
        B(f"v_pk_fma_f32 {vr(EP+i,2)}, {vr(PP+i,2)}, {vr(LSC,2)}, {vr(TM+8,2)} op_sel_hi:[1,0,0] neg_lo:[0,0,1] neg_hi:[0,0,1]")
    for i in range(0, 20, 2):
        B(f"v_pk_fma_f32 {vr(EN+i,2)}, {vr(PP+i,2)}, {vr(LSC,2)}, {vr(TM+10,2)} op_sel_hi:[1,0,0] neg_lo:[1,0,0] neg_hi:[1,0,0]")
    for i in range(40):
        B(f"v_exp_f32 v{EP+i}, v{EP+i}")
    ET = ((EP, TM), (EN, TM + 6))
    for E, t in ET:
        B(f"v_pk_add_f32 {vr(t,2)}, {vr(E,2)}, {vr(E+2,2)}")
        B(f"v_pk_add_f32 {vr(t+2,2)}, {vr(E+4,2)}, {vr(E+6,2)}")
        B(f"v_pk_add_f32 {vr(t+4,2)}, {vr(E+8,2)}, {vr(E+10,2)}")
    for E, t in ET:
        B(f"v_pk_add_f32 {vr(t,2)}, {vr(t,2)}, {vr(E+12,2)}")
        B(f"v_pk_add_f32 {vr(t+2,2)}, {vr(t+2,2)}, {vr(E+14,2)}")
        B(f"v_pk_add_f32 {vr(t+4,2)}, {vr(t+4,2)}, {vr(E+16,2)}")
    for E, t in ET:
        B(f"v_pk_add_f32 {vr(t,2)}, {vr(t,2)}, {vr(E+18,2)}")
        B(f"v_pk_add_f32 {vr(t+2,2)}, {vr(t+2,2)}, {vr(t+4,2)}")
    for E, t in ET: B(f"v_pk_add_f32 {vr(t,2)}, {vr(t,2)}, {vr(t+2,2)}")
    for E, t in ET: B(f"v_add_f32 v{t}, v{t}, v{t+1}")
    for E, t in ET: B(f"v_rcp_f32 v{t}, v{t}")
    for E, t in ET:
        for i in range(0, 20, 2):
            B(f"v_pk_mul_f32 {vr(E+i,2)}, {vr(E+i,2)}, {vr(t,2)} op_sel_hi:[1,0]")
    for i in range(20):
        B(f"v_cvt_pk_bf16_f32 v{PH+i}, v{EP+2*i}, v{EP+2*i+1}")
    step = len(body) // max(ndma - 1, 1)
    left = ndma - 1
    for i, l in enumerate(body):
        A(l)
        if left and i % step == step - 1:
            site(); left -= 1
    while left: site(); left -= 1
    A("s_setpc_b64 s[80:81]")

NSMX = 6
cfg_f5pos = [40]
def call_smx(A, dma):
    A("s_call_b64 s[80:81], L_smx\ns_nop 1")
    if dma:
        for _ in range(NSMX): A.vm.append(("w1", True))

def lds_base(off):
    return ("v2", "v3", "v4")[off >> 16], off & 0xffff

def store_parity(A, par, P, ntile, voff, soff, stride, tag, local=False):
    def body(E):
        lo, le = A.label("odd"), A.label("se")
        A(f"s_bitcmp1_b32 {par}, 0\ns_cbranch_scc1 {lo}")
        h = ntile // 2
        for k in range(h):
            E(f"buffer_store_dwordx4 {vr(P+4*k,4)}, {voff}, {SWS}, {soff} offen offset:{k*stride}@")
        E(f"buffer_store_dwordx2 {vr(P+4*h,2)}, {voff}, {SWS}, {soff} offen offset:{h*stride}@")
        A(f"s_branch {le}\n{lo}:")
        E(f"buffer_store_dwordx2 {vr(P,2)}, {voff}, {SWS}, {soff} offen offset:{h*stride+8}@")
        for k in range(h):
            o = (h + 1 + k) * stride
            if o >= 4096:
                A(f"s_add_u32 s56, {soff}, 4096")
                E(f"buffer_store_dwordx4 {vr(P+2+4*k,4)}, {voff}, {SWS}, s56 offen offset:{o-4096}@")
            else:
                E(f"buffer_store_dwordx4 {vr(P+2+4*k,4)}, {voff}, {SWS}, {soff} offen offset:{o}@")
        A(f"{le}:")
    if local: either(A, body, tag)
    else:
        A.cond += 1
        body(lambda t: A(t.replace("@", " sc1"), tag))
        A.cond -= 1

def phase_A(A, cfg):
    A("; ---- phase A ----")
    WL = f"buffer_load_dwordx4 v2, {SWS}, s53 offen{SC} lds\ns_add_u32 m0, m0, 4096\ns_add_u32 s53, s53, 4096"
    WL3 = WL + "\ns_cmp_ge_u32 s53, s101\ns_cselect_b32 s55, 122880, 0\ns_sub_u32 s53, s53, s55"
    WQL = f"buffer_load_dwordx4 v2, {SWS}, s100 offen{SC} lds\ns_add_u32 m0, m0, 4096\ns_add_u32 s100, s100, 4096\ns_add_u32 s55, s101, 40960\ns_cmp_ge_u32 s100, s55\ns_cselect_b32 s55, 40960, 0\ns_sub_u32 s100, s100, s55"
    def blk3(b): return [(WL, f"b{b}"), (WL, f"b{b}"), (WL3, f"b{b}")]
    if getattr(cfg, "hotA", 0): A("s_mov_b32 s53, s7\ns_mov_b32 s101, 122880\ns_add_u32 s100, s7, 122880")
    A("s_mov_b32 m0, s7")
    AHEAD = cfg.aheadA
    A("s_nop 0")
    for t, tg in blk3(0): A(t, tg)
    for i in range(2):
        A(f"buffer_load_dwordx4 {vr(124+4*i,4)}, v2, {SWS}, s54 offen offset:{i*1024}{SC}", "cs")
    for b in range(1, AHEAD):
        for t, tg in blk3(b): A(t, tg)
    accs = (ACK, ACV, ACL)
    def reads(blk):
        buf = WA0 if blk % 2 == 0 else WA1
        out = []
        for j in range(12):
            b, o = lds_base((12 * blk + j) * 1024)
            out.append(f"ds_read_b128 {ar(buf+4*j,4)}, {b} offset:{o}")
        return out
    side = []
    for i in range(1, 2):
        side += [f"v_add_f32 v{124+j}, v{124+j}, v{124+4*i+j}" for j in range(4)]
    side += [f"v_mov_b32 v{128+j}, v{124+j}" for j in range(4)]
    side += [f"v_permlane32_swap_b32 v{124+j}, v{128+j}" for j in range(4)]
    side += [f"v_add_f32 v{124+j}, v{124+j}, v{128+j}" for j in range(4)]
    side += ["ds_write_b128 v235, v[124:127]"]
    side2 = [f"ds_read_b32 v{124+4*w+T}, v240 offset:{w*512+T*128}" for w in range(4) for T in range(4)]
    side3 = [f"v_add_f32 v{124+T}, v{124+T}, v{124+4*w+T}" for w in range(1, 4) for T in range(4)]
    for T in range(4):
        F = CSF + 4 * T
        side3 += [f"v_cvt_pk_bf16_f32 v{F+1}, v{124+T}, 0", f"v_lshlrev_b32 v{128+T}, 16, v{F+1}", f"v_sub_f32 v{128+T}, v{124+T}, v{128+T}",
                  f"v_cvt_pk_bf16_f32 v{F}, v{124+T}, v{128+T}", f"v_mov_b32 v{F+2}, 0", f"v_mov_b32 v{F+3}, 0"]
    stamp(A, cfg, 7)
    A.wait("b0"); A("s_barrier")
    stamp(A, cfg, 8)
    lchk, lslow = A.label("chk"), A.label("slow")
    D = 9
    def rd(f):
        b, o = lds_base(f * 1024)
        return f"ds_read_b128 {ar(160+4*(f%24),4)}, {b} offset:{o}"
    for f in range(D): A(rd(f))
    for blk in range(10):
        if blk + AHEAD < 10 and not getattr(cfg, "noloadA", 0): A.bg += blk3(blk + AHEAD)
        if blk >= 6 and getattr(cfg, "noloadA", 0) < 2: A.bg += [(WQL, "tq")] * (3 if blk < 8 else 2)
        if blk == 1: A.wait("cs")
        sw = side if blk == 1 else side2 if blk == 3 else side3 if blk in (5, 6) else []
        flat = []
        for t, tg in A.bg:
            ls = t.split("\n")
            c = [i for i, l in enumerate(ls) if l.startswith("s_cmp")]
            if c: ls = ls[:c[0]] + ["\n".join(ls[c[0]:])]
            flat += [(l, tg) for l in ls]
        A.bg = []
        other = [(sw.pop(0), None) for _ in range(min(len(sw), 24))]
        if blk == 8: flat = [(f"v_lshlrev_b32 v6, 7, v1", None), (f"s_mov_b32 s58, {FLG + 5*8192}", None), (f"buffer_load_dwordx4 v[196:199], v6, {SWS}, s58 offen sc1", "f5")] + flat
        for j in range(12):
            f = 12 * blk + j
            s = 4 * blk + j // 3
            acc = accs[j % 3]
            if (f + D) % 12 == 0 and f + D < 120:
                A.wait(f"b{(f+D)//12}"); A("s_barrier")
            if f % 2 == 0: A(f"s_waitcnt lgkmcnt({max(0, min(D - 2, 118 - f))})")
            A(f"v_mfma_f32_32x32x16_bf16 {vr(acc,16)}, {ar(160+4*(f%24),4)}, {ar(4*s,4)}, {'0' if s==0 else vr(acc,16)}")
            if f + D < 120: A(rd(f + D))
            if f == 114:
                A.wait("f5", "lgkmcnt(0)")
                A.cond += 1
                A(f"""
                s_cmp_lg_u32 {sWAVE}, 0
                s_cbranch_scc1 {lchk}
                v_xor_b32 v196, {sNONCE}, v196
                v_xor_b32 v197, {sNONCE}, v197
                v_xor_b32 v198, {sNONCE}, v198
                v_xor_b32 v199, {sNONCE}, v199
                v_or3_b32 v196, v196, v197, v198
                v_or_b32 v196, v196, v199
                v_cmp_ne_u32 vcc, 0, v196
                s_cbranch_vccz {lchk}
                """)
                poll_global(A, 5, 196)
                A(f"{lchk}:")
                A.cond -= 1
                stamp(A, cfg, 9)
                A("s_barrier")
            for lst in (flat, other):
                n = -(-len(lst) // (12 - j)) if f < 108 else (-(-len(lst) // (114 - f)) if f < 114 else len(lst))
                for _ in range(n):
                    l, tg = lst.pop(0); A(l, tg)
    assert not A.bg and not side and not side2 and not side3
    for T in range(3):
        A(f"v_mfma_f32_32x32x16_bf16 {vr(accs[T],16)}, {vr(CSF+4*T,4)}, {vr(MF,4)}, {vr(accs[T],16)}")
    stamp(A, cfg, 12)
    A(f"""
    v_mov_b32 v{U+10}, 0
    v_mov_b32 v{U+11}, 0
    v_mov_b32 v{VV+10}, 0x3f80
    v_mov_b32 v{VV+11}, 0
    """)
    A.bg += wo_groups() + [(W1G, "w1")] * (25 - 2 * NSMX)
    A.pace(cfg.iv_k, cfg.n_k)
    for ch in range(1, 8): A(f"v_xor_b32 v{96+ch}, {ch*16}, v{aPKW}")
    for i in range(8): A(f"v_cvt_pk_bf16_f32 v{U+i}, v{ACK+2*i}, v{ACK+2*i+1}")
    for i in range(8): A(f"v_pk_mul_f32 {vr(ACV+2*i,2)}, {vr(ACV+2*i,2)}, {vr(RSTD,2)} op_sel_hi:[1,0]")
    for i in range(8): A(f"v_cvt_pk_bf16_f32 v{VV+i}, v{ACV+2*i}, v{ACV+2*i+1}")
    A(f"""
    v_cvt_pk_bf16_f32 v{U+8}, v{ACL+4}, v{ACL+5}
    v_cvt_pk_bf16_f32 v{U+9}, v{ACL+6}, v{ACL+7}
    v_pk_mul_f32 {vr(ACL+8,2)}, {vr(ACL+8,2)}, {vr(RSTD,2)} op_sel_hi:[1,0]
    v_pk_mul_f32 {vr(ACL+10,2)}, {vr(ACL+10,2)}, {vr(RSTD,2)} op_sel_hi:[1,0]
    v_cvt_pk_bf16_f32 v{QL}, v{ACL}, v{ACL+1}
    v_cvt_pk_bf16_f32 v{QL+1}, v{ACL+2}, v{ACL+3}
    v_cvt_pk_bf16_f32 v{VV+8}, v{ACL+8}, v{ACL+9}
    v_cvt_pk_bf16_f32 v{VV+9}, v{ACL+10}, v{ACL+11}
    """)
    for ch in range(5, 8): A(f"ds_write_b128 v{96+ch}, {vr(VV+4*(ch-5),4)}")
    A.pace(0)
    call_smx(A, True)
    for ch in range(5):
        A(f"ds_write_b128 v{aPKW if ch == 0 else 96+ch}, {vr(PH+4*ch,4)}")
    A.wait("tq", "lgkmcnt(0)")
    A("s_barrier")
    for s in range(8):
        b = 112 + 8 * s
        A(f"ds_read_b64_tr_b16 {vr(b,2)}, v{aTRA0} offset:{s*2048}")
        A(f"ds_read_b64_tr_b16 {vr(b+2,2)}, v{aTRA1} offset:{s*2048+512}")
        A(f"ds_read_b64_tr_b16 {vr(b+4,2)}, v{aTRB0} offset:{s*2048}")
        A(f"ds_read_b64_tr_b16 {vr(b+6,2)}, v{aTRB1} offset:{s*2048+512}")
        if s >= 2:
            t = s - 2
            A("s_waitcnt lgkmcnt(8)")
            A(f"v_mfma_f32_32x32x16_bf16 {vr(48,16)}, {vr(112+8*t,4)}, {vr(116+8*t,4)}, {'0' if t==0 else vr(48,16)}")
    for t in (6, 7):
        A(f"s_waitcnt lgkmcnt({4 if t==6 else 0})")
        A(f"v_mfma_f32_32x32x16_bf16 {vr(48,16)}, {vr(112+8*t,4)}, {vr(116+8*t,4)}, {vr(48,16)}")
    P2 = 176
    for s in range(8):
        b, o = lds_base((120 + s) * 1024)
        A(f"ds_read_b128 {vr(P2+4*(s%10),4)}, {b} offset:{o}")
    lsk = A.label("kvst")
    A(f"""
    s_mov_b32 s55, 0x1fffff
    s_mov_b32 exec_lo, s55
    s_mov_b32 exec_hi, s55
    s_cmp_eq_u32 s6, 1
    """)
    A(f"buffer_store_dwordx4 {vr(48,4)}, v{aKVS}, {SWS}, s3 offen sc1", "kvp")
    A.cond += 1
    A(f"s_cbranch_scc1 {lsk}")
    for k in range(1, 4):
        A(f"buffer_store_dwordx4 {vr(48+4*k,4)}, v{aKVS}, {SWS}, s3 offen offset:{672*k} sc1", "kvp")
    A(f"{lsk}:")
    A.cond -= 1
    A("s_mov_b64 exec, -1")
    stamp(A, cfg, 13)
    SIG = cfg.p2sig
    if cfg.p2from0: A.pace(cfg.iv_p2, cfg.n_p2)
    for s in range(40):
        if s == SIG:
            signal_group(A, 1, sCA, sRA, "kvp")
            stamp(A, cfg, 14)
            if not cfg.p2from0: A.pace(cfg.iv_p2, cfg.n_p2)
        A(f"s_waitcnt lgkmcnt({min(7, 39-s)})")
        A(f"v_mfma_f32_32x32x16_bf16 {vr(ACQ,16)}, {vr(P2+4*(s%10),4)}, {ar(4*s,4)}, {'0' if s==0 else vr(ACQ,16)}")
        if s + 8 < 40:
            b, o = lds_base((120 + s + 8) * 1024)
            A(f"ds_read_b128 {vr(P2+4*((s+8)%10),4)}, {b} offset:{o}")
    A(f"v_mfma_f32_32x32x16_bf16 {vr(ACQ,16)}, {vr(CSF+12,4)}, {vr(MF,4)}, {vr(ACQ,16)}")
    A.pace(0)
    A.bg += w2_groups(0, 40)
    stamp(A, cfg, 15)
    A(f"""
    s_barrier
    v_mov_b32 v32, 0
    v_mov_b32 v33, 0
    v_mov_b32 v{U+8}, v{QL}
    v_mov_b32 v{U+9}, v{QL+1}
    v_mov_b32 v{U+10}, 0
    v_mov_b32 v{U+11}, 0
    v_add_u32 v34, 4096, v{aKVL}
    v_min_u32 v34, 6704, v34
    """)
    for k in range(5): A(f"ds_write_b64 v{aZ}, v[32:33] offset:{8*k}")
    for i in range(8): A(f"v_cvt_pk_bf16_f32 v{U+i}, v{ACQ+2*i}, v{ACQ+2*i+1}")
    call_smx(A, True)
    A(f"v_cmp_gt_u32 vcc, 164, v0\ns_waitcnt lgkmcnt(0)\ns_mov_b64 s[86:87], vcc")
    A.sprinkle(cfg.n_q)
    stamp(A, cfg, 16)
    wait_group(A, 1, sCA)
    stamp(A, cfg, 17)
    RB = 40
    for p in range(16):
        A(f"buffer_load_dwordx4 {vr(RB+8*p,4)}, v{aKVL}, {SWS}, s4 offen sc1", f"p{p}")
        A(f"buffer_load_dwordx4 {vr(RB+8*p+4,4)}, v34, {SWS}, s4 offen sc1", f"p{p}")
        if p < 15: A("s_add_u32 s4, s4, 6784")
    A.sprinkle(cfg.n_red)
    for p in range(1, 16):
        A.wait(f"p{p}")
        for j in range(0, 8, 2):
            A(f"v_pk_add_f32 {vr(RB+j,2)}, {vr(RB+j,2)}, {vr(RB+8*p+j,2)}")
    for j in range(4): A(f"v_cvt_pk_bf16_f32 v{RB+j}, v{RB+2*j}, v{RB+2*j+1}")
    A(f"""
    ds_write_b64 v{aKVF}, {vr(RB,2)}
    s_mov_b64 exec, s[86:87]
    ds_write_b64 v{aKVF2}, {vr(RB+2,2)}
    s_mov_b64 exec, -1
    s_waitcnt lgkmcnt(0)
    s_barrier
    """)
    stamp(A, cfg, 18)
    b, o = lds_base(KVF_LDS)
    for i in (0, 5, 1, 6, 2, 7, 3, 8, 4, 9): A(f"ds_read_b128 {vr(40+4*i,4)}, {b} offset:{o + i*1024}")
    for s5 in range(5):
        for tau in range(2):
            i = tau * 5 + s5
            A(f"s_waitcnt lgkmcnt({9-2*s5-tau})")
            A(f"v_mfma_f32_32x32x16_bf16 {vr(96+16*tau,16)}, {vr(40+4*i,4)}, {vr(PH+4*s5,4)}, {'0' if s5==0 else vr(96+16*tau,16)}")
    A(f"v_add_f32 v34, 0x358637bd, v{96+20}\nv_rcp_f32 v34, v34")
    for i in range(0, 20, 2):
        A(f"v_pk_mul_f32 {vr(96+i,2)}, {vr(96+i,2)}, v[34:35] op_sel_hi:[1,0]")
    for i in range(10): A(f"v_cvt_pk_bf16_f32 v{40+i}, v{96+2*i}, v{97+2*i}")
    store_parity(A, sCA, 40, 5, f"v{aOST}", "s5", 256, "o", cfg.mapA == cfg.mapB)
    stamp(A, cfg, 19)

BRED_LDS = 100 * 1024
CF1 = 180
def phase_B(A, cfg):
    OFR, ACC = 8, 88
    A("; ---- phase B ----")
    A(f"""
    s_lshr_b32 s62, {sC}, 1
    s_and_b32 s63, {sC}, 1
    s_lshl_b32 s64, {sR}, 3
    s_lshl_b32 s55, s63, 2
    s_add_u32 s64, s64, s55
    s_add_u32 s65, s64, {sWAVE}
    s_mul_i32 s61, s65, 20480
    s_mul_i32 s55, s62, 160
    s_add_u32 s61, s61, s55
    v_and_b32 v8, 15, v1
    v_lshrrev_b32 v9, 4, v1
    v_mul_u32_u24 v8, 1280, v8
    v_lshl_add_u32 v8, v9, 3, v8
    """)
    signal_group(A, 2, sRA, sCA, "o", cfg.mapA == cfg.mapB)
    stamp(A, cfg, 20)
    for T in range(5):
        A(f"buffer_load_dwordx2 {vr(XR+2*T,2)}, v8, {SX}, s61 offen offset:{T*32}", "xr")
    must = sum(1 for t, tg in A.bg if tg in ("wo", "w1"))
    A.sprinkle(max(must, cfg.n_h2))
    for i in range(4):
        A(f"""
        s_add_u32 s55, {sWAVE}, {i}
        s_and_b32 s55, s55, 3
        s_add_u32 s56, s55, s64
        s_mul_i32 s{66+i}, s56, 20480
        s_mul_i32 s56, {sWAVE}, 5120
        s_add_u32 s{66+i}, s{66+i}, s56
        s_add_u32 s{66+i}, s{66+i}, {OF}
        s_mul_i32 s55, s55, 15360
        s_add_u32 s55, s55, {BRED_LDS + max(i-1,0)*5120}
        v_add_u32 v{168+i}, s55, v2
        """)
    A(f"""
    s_mul_i32 s60, s65, 20480
    s_lshr_b32 s55, s62, 1
    s_mul_i32 s55, s55, 5120
    s_add_u32 s60, s60, s55
    s_add_u32 s60, s60, {HF}
    s_lshl_b32 s61, s65, 10
    s_lshl_b32 s55, s62, 7
    s_add_u32 s61, s61, s55
    s_add_u32 s61, s61, {STT}
    v_lshlrev_b32 v172, 3, v1
    """)
    stamp(A, cfg, 24)
    wait_group(A, 2, sR)
    stamp(A, cfg, 21)
    def oload(st, i):
        if getattr(cfg, "noload", 0): return
        if st < 4:
            A(f"buffer_load_dwordx4 {vr(OFR+4*(4*st+i),4)}, v2, {SWS}, s{66+i} offen offset:{st*1024}{SC}", f"o{st}{i}")
        else:
            A(f"s_add_u32 s55, s{66+i}, 4096\nbuffer_load_dwordx4 {vr(OFR+4*(4*st+i),4)}, v2, {SWS}, s55 offen{SC}", f"o{st}{i}")
    order = [(st, i) for st in range(5) for i in (1, 2, 3)] + [(st, 0) for st in range(5)]
    W = cfg.aheadB
    for e in order[:W]: oload(*e)
    wr = [(i, T) for i in (1, 2, 3) for T in range(5)]
    for n, (st, i) in enumerate(order):
        A.wait(f"o{st}{i}")
        for T in range(5):
            acc = vr(ACC + 4 * (5 * i + T), 4)
            A(f"v_mfma_f32_16x16x32_bf16 {acc}, {woreg(T,st)}, {vr(OFR+4*(4*st+i),4)}, {'0' if st==0 else acc}")
            if T == 1 and n + W < len(order): oload(*order[n + W])
            if i == 0 and (5 * st + T) >= 2 and wr and (5 * st + T) % 3 != 0:
                wi, wT = wr.pop(0)
                A(f"ds_write_b128 v{168+wi}, {vr(ACC+4*(5*wi+wT),4)} offset:{wT*1024}")
    for wi, wT in wr: A(f"ds_write_b128 v{168+wi}, {vr(ACC+4*(5*wi+wT),4)} offset:{wT*1024}")
    stamp(A, cfg, 22)
    A.sprinkle(cfg.n_b)
    for T in range(5):
        A(f"v_lshlrev_b32 v{68+4*(T%2)}, 16, v{XR+2*T}\nv_and_b32 v{69+4*(T%2)}, 0xffff0000, v{XR+2*T}")
        A(f"v_lshlrev_b32 v{70+4*(T%2)}, 16, v{XR+2*T+1}\nv_and_b32 v{71+4*(T%2)}, 0xffff0000, v{XR+2*T+1}")
        A(f"v_pk_add_f32 {vr(ACC+4*T,2)}, {vr(ACC+4*T,2)}, {vr(68+4*(T%2),2)}")
        A(f"v_pk_add_f32 {vr(ACC+4*T+2,2)}, {vr(ACC+4*T+2,2)}, {vr(70+4*(T%2),2)}")
    A("s_waitcnt lgkmcnt(0)\ns_barrier")
    for k in range(15): A(f"ds_read_b128 {vr(8+4*k,4)}, v168 offset:{k*1024}")
    for k in range(15):
        T = k % 5
        A(f"s_waitcnt lgkmcnt({14-k})")
        A(f"v_pk_add_f32 {vr(ACC+4*T,2)}, {vr(ACC+4*T,2)}, {vr(8+4*k,2)}")
        A(f"v_pk_add_f32 {vr(ACC+4*T+2,2)}, {vr(ACC+4*T+2,2)}, {vr(10+4*k,2)}")
    for i in range(10): A(f"v_cvt_pk_bf16_f32 v{HK+i}, v{ACC+2*i}, v{ACC+2*i+1}")
    store_parity(A, "s62", HK, 5, "v2", "s60", 1024, "h", True)
    A(f"v_pk_add_f32 v[8:9], {vr(ACC,2)}, {vr(ACC+2,2)}\nv_pk_mul_f32 v[10:11], {vr(ACC,2)}, {vr(ACC,2)}")
    A(f"v_pk_fma_f32 v[10:11], {vr(ACC+2,2)}, {vr(ACC+2,2)}, v[10:11]")
    for i in range(4, 20, 2):
        A(f"v_pk_add_f32 v[8:9], v[8:9], {vr(ACC+i,2)}\nv_pk_fma_f32 v[10:11], {vr(ACC+i,2)}, {vr(ACC+i,2)}, v[10:11]")
    A("v_add_f32 v8, v8, v9\nv_add_f32 v9, v10, v11")
    allreduce_16_32(A, [(8, 10), (9, 11)])
    A("s_mov_b64 exec, 0xffff")
    either(A, lambda E: E(f"buffer_store_dwordx2 v[8:9], v172, {SWS}, s61 offen@"), "h")
    A("s_mov_b64 exec, -1")
    stamp(A, cfg, 23)

WBA, CS_A = 196, 228
def phase_C(A, cfg):
    HFR, ACC, ST = 8, 168, 224
    A("; ---- phase C ----")
    A(f"""
    s_lshl_b32 s64, {sR}, 3
    s_lshl_b32 s55, {sWAVE}, 1
    s_add_u32 s64, s64, s55
    s_mul_i32 s60, s64, 20480
    s_add_u32 s60, s60, {HF}
    s_add_u32 s61, s60, 20480
    s_lshl_b32 s62, s64, 10
    s_add_u32 s62, s62, {STT}
    v_and_b32 v5, 15, v1
    v_lshrrev_b32 v12, 4, v1
    v_lshlrev_b32 v5, 3, v5
    v_lshl_add_u32 v5, v12, 8, v5
    s_mul_i32 s66, s64, 55296
    s_lshr_b32 s55, {sC}, 1
    s_mul_i32 s55, s55, 7168
    s_add_u32 s66, s66, s55
    s_add_u32 s66, s66, {H1F}
    s_add_u32 s67, s66, 55296
    s_add_u32 s68, s66, 4096
    s_add_u32 s69, s67, 4096
    """)
    signal_group(A, 3, sR, sC, "h", True)
    stamp(A, cfg, 30)
    A(f"""
    v_lshrrev_b32 v9, 5, v1
    v_and_b32 v10, 31, v1
    v_min_u32 v10, 27, v10
    v_mul_u32_u24 v9, 6912, v9
    v_lshl_add_u32 v9, v10, 4, v9
    s_mul_i32 s70, {sC}, 448
    s_mul_i32 s55, {sWAVE}, {4*6912}
    s_add_u32 s70, s70, s55
    s_add_u32 s70, s70, {CS1}
    s_add_u32 s71, s70, {2*6912}
    """)
    A(f"buffer_load_dwordx4 v[12:15], v9, {SWS}, s70 offen{SC}\nbuffer_load_dwordx4 v[16:19], v9, {SWS}, s71 offen{SC}", "c1")
    A.bg = [(W1G, "w1b")] * 10 + A.bg + w2_groups(40, 49)
    A.sprinkle(cfg.n_h3)
    A(f"""
    s_lshl_b32 s55, {sWAVE}, 9
    s_add_u32 s55, s55, {HOLE2_LDS}
    v_lshlrev_b32 v10, 4, v10
    v_add_u32 v10, s55, v10
    v_and_b32 v11, 15, v1
    v_lshlrev_b32 v11, 2, v11
    v_add_u32 v241, {HOLE2_LDS}, v11
    """)
    A.wait("c1")
    A("v_pk_add_f32 v[12:13], v[12:13], v[16:17]\nv_pk_add_f32 v[14:15], v[14:15], v[18:19]")
    for j in range(4): A(f"v_mov_b32 v{16+j}, v{12+j}")
    for j in range(4): A(f"v_permlane32_swap_b32 v{12+j}, v{16+j}")
    A("v_pk_add_f32 v[12:13], v[12:13], v[16:17]\nv_pk_add_f32 v[14:15], v[14:15], v[18:19]\nds_write_b128 v10, v[12:15]\ns_waitcnt lgkmcnt(0)")
    stamp(A, cfg, 31)
    wait_group(A, 3, sR)
    if getattr(cfg, "hot", 0): A(f"s_mul_i32 s60, {sWAVE}, 40960\ns_add_u32 s61, s60, 20480")
    stamp(A, cfg, 32)
    def hl(s):
        if getattr(cfg, "noload", 0): return
        for i in range(2):
            A(f"buffer_load_dwordx4 {vr(HFR+8*s+4*i,4)}, v2, {SWS}, s{60+i} offen offset:{(s%4)*1024}{cfg.ld}", f"h{s}")
        if s % 4 == 3 and s < 19: A("s_add_u32 s60, s60, 4096\ns_add_u32 s61, s61, 4096")
    W = cfg.aheadC
    hl(0)
    for i in range(2):
        for j in range(2):
            A(f"buffer_load_dwordx2 {vr(ST+4*i+2*j,2)}, v5, {SWS}, s62 offen offset:{i*1024+j*128}{cfg.ld}", "st")
    for s in range(1, W): hl(s)
    seq = [(s, T) for s in range(20) for T in range(5)] + [(s, T) for s in range(20) for T in (5, 6)]
    NB = 8
    def rd(k):
        s, T = seq[k]
        b, o = lds_base(T * 20480 + s * 1024)
        A(f"ds_read_b128 {ar(WBA+4*(k%NB),4)}, {b} offset:{o}")
    for k in range(6): rd(k)
    side = [f"v_add_f32 v{ST}, v{ST}, v{ST+2}", f"v_add_f32 v{ST+4}, v{ST+4}, v{ST+6}"]
    pairs = [(ST, ST + 2), (ST + 4, ST + 6)]
    for sw in ("v_permlane16_swap_b32", "v_permlane32_swap_b32"):
        side += [f"v_mov_b32 v{t}, v{v}" for v, t in pairs] + [f"{sw} v{v}, v{t}" for v, t in pairs] + [f"v_add_f32 v{v}, v{v}, v{t}" for v, t in pairs]
    side += ["v_cmp_gt_u32 vcc, 16, v1"]
    for i in range(2):
        v, F = ST + 4 * i, 232 + 4 * i
        side += [f"v_mul_f32 v{v}, 0xbacccccd, v{v}", f"v_cndmask_b32 v{v}, 0, v{v}, vcc", f"v_cvt_pk_bf16_f32 v{F}, v{v}, v{v}", f"v_lshlrev_b32 v{v+1}, 16, v{F}",
                 f"v_sub_f32 v{v+1}, v{v}, v{v+1}", f"v_cvt_pk_bf16_f32 v{F+1}, v{v+1}, 0", f"v_mov_b32 v{F+2}, 0", f"v_mov_b32 v{F+3}, 0"]
    cs_side = []
    for T in range(7):
        cs_side += [f"ds_read_b32 v240, v241 offset:{T*64}\nds_read_b32 v242, v241 offset:{T*64+512}\nds_read_b32 v243, v241 offset:{T*64+1024}\nds_read_b32 v6, v241 offset:{T*64+1536}",
                    None, None, None, None, None, None,
                    "v_add_f32 v240, v240, v242", "v_add_f32 v243, v243, v6", "v_add_f32 v240, v240, v243",
                    "v_cvt_pk_bf16_f32 v242, v240, 0", "v_lshlrev_b32 v243, 16, v242", f"v_accvgpr_write_b32 a{CS_A+4*T+1}, v242\nv_sub_f32 v243, v240, v243",
                    f"v_cvt_pk_bf16_f32 v240, v240, v243\nv_accvgpr_write_b32 a{CS_A+4*T+2}, 0", f"v_accvgpr_write_b32 a{CS_A+4*T}, v240\nv_accvgpr_write_b32 a{CS_A+4*T+3}, 0"]
    for k, (s, T) in enumerate(seq):
        if T == 0: A.wait(f"h{s}")
        if k == 94:
            assert not any(tg == "w1b" for t, tg in A.bg)
            A.wait("w1b"); A("s_barrier")
            A.pace(cfg.iv_c2, cfg.n_c2)
        if k == 21: A.wait("st")
        if k % 2 == 0: A(f"s_waitcnt lgkmcnt({max(0, min(4, len(seq)-2-k))})")
        for i in range(2):
            acc = vr(ACC + 4 * (7 * i + T), 4)
            A(f"v_mfma_f32_16x16x32_bf16 {acc}, {ar(WBA+4*(k%NB),4)}, {vr(HFR+8*s+4*i,4)}, {'0' if s==0 else acc}")
            if i == 0 and k + 6 < len(seq): rd(k + 6)
        if k >= 21 and k % 2 == 1 and side: A(side.pop(0))
        if k >= 2 and cs_side:
            l = cs_side.pop(0)
            if l: A(l)
        if T == 1 and s + W < 20: hl(s + W)
        if k == cfg.c_from: A.pace(cfg.iv_c, cfg.n_c)
    A.pace(0)
    assert not side and not cs_side
    for i in range(2):
        for T in range(7):
            acc = vr(ACC + 4 * (7 * i + T), 4)
            A(f"v_mfma_f32_16x16x32_bf16 {acc}, {ar(CS_A+4*T,4)}, {vr(232+4*i,4)}, {acc}")
    stamp(A, cfg, 33)
    for i in range(2):
        for T in range(7):
            for h in range(2):
                a = ACC + 4 * (7 * i + T) + 2 * h
                A(f"v_cvt_pk_bf16_f32 v{64+16*i+2*T+h}, v{a}, v{a+1}")
        for T in range(7):
            for h in range(2):
                A(f"v_pk_max_i16 v{64+16*i+2*T+h}, v{64+16*i+2*T+h}, 0")
        P = 64 + 16 * i
        def body(E):
            l15, le = A.label("c15"), A.label("ce")
            A(f"s_bitcmp1_b32 {sC}, 0\ns_cbranch_scc1 {l15}")
            for k in range(3): E(f"buffer_store_dwordx4 {vr(P+4*k,4)}, v2, {SWS}, s{66+i} offen offset:{k*1024}@")
            E(f"buffer_store_dwordx2 {vr(P+12,2)}, v2, {SWS}, s{66+i} offen offset:3072@")
            A(f"s_branch {le}\n{l15}:")
            E(f"buffer_store_dwordx2 {vr(P,2)}, v2, {SWS}, s{66+i} offen offset:{3072+8}@")
            E(f"buffer_store_dwordx4 {vr(P+2,4)}, v2, {SWS}, s{68+i} offen@")
            A(f"s_cmp_eq_u32 {sC}, 15\ns_cbranch_scc1 {le}")
            E(f"buffer_store_dwordx4 {vr(P+6,4)}, v2, {SWS}, s{68+i} offen offset:1024@")
            E(f"buffer_store_dwordx4 {vr(P+10,4)}, v2, {SWS}, s{68+i} offen offset:2048@")
            A(f"{le}:")
        either(A, body, "h1")
    stamp(A, cfg, 34)

def phase_D(A, cfg):
    ACC, HB = 8, 88
    A("; ---- phase D ----")
    lno, lo2, lw = A.label("noopt"), A.label("opt2"), A.label("optw")
    A(f"""
    s_lshr_b32 s62, {sC}, 1
    s_and_b32 s63, {sC}, 1
    s_lshl_b32 s64, {sR}, 3
    s_lshl_b32 s55, s63, 2
    s_add_u32 s64, s64, s55
    """)
    for i in range(4):
        A(f"""
        s_add_u32 s55, {sWAVE}, {i}
        s_and_b32 s55, s55, 3
        s_add_u32 s56, s55, s64
        s_mul_i32 s{66+i}, s56, 55296
        s_add_u32 s{66+i}, s{66+i}, s52
        s_add_u32 s{66+i}, s{66+i}, {H1F}
        s_mul_i32 s55, s55, 15360
        s_add_u32 s55, s55, {max(i-1,0)*5120}
        v_add_u32 v{240+i}, s55, v2
        """)
    A(f"""
    s_add_u32 s55, s64, {sWAVE}
    s_lshl_b32 s61, s55, 10
    s_add_u32 s61, s61, {STT}
    s_mul_i32 s60, s55, 20480
    s_mul_i32 s55, s62, 160
    s_add_u32 s60, s60, s55
    """)
    signal_group(A, 4, sR, sC, "h1", True)
    stamp(A, cfg, 40)
    for j in range(2):
        A(f"buffer_load_dwordx2 {vr(200+2*j,2)}, v5, {SWS}, s61 offen offset:{j*128}{cfg.ld}", "st")
    A.bg += w2_groups(49, 65)
    A.sprinkle(cfg.n_h4)
    A.wait("st")
    A("v_add_f32 v200, v200, v202\nv_add_f32 v201, v201, v203")
    allreduce_16_32(A, [(200, 202), (201, 203)])
    stats_finish(A, 200, 201, 202)
    A("v_mov_b32 v5, v200")
    stamp(A, cfg, 41)
    wait_group(A, 4, sR)
    if getattr(cfg, "hot", 0):
        for i in range(4): A(f"s_add_u32 s{66+i}, s52, {i*55296}")
    stamp(A, cfg, 42)
    def hload(st, i, slot):
        if getattr(cfg, "noload", 0): return
        pre = f"s_add_u32 s55, s{66+i}, {(st//4)*4096}\n" if st >= 4 else ""
        A(pre + f"buffer_load_dwordx4 {vr(HB+4*slot,4)}, v2, {SWS}, {'s55' if st >= 4 else 's%d' % (66+i)} offen offset:{(st%4)*1024}{cfg.ld}", f"g{st}_{i}")
    def mm(st, i, slot, first=False, extra=None):
        for T in range(5):
            acc = vr(ACC + 4 * (5 * i + T), 4)
            A(f"v_mfma_f32_16x16x32_bf16 {acc}, {w2reg(st,T)}, {vr(HB+4*slot,4)}, {'0' if first else acc}")
            if extra: extra(T)
    HOLD = cfg.holdD
    order = []
    for st in range(13):
        order += [(st, i) for i in ((0, 1, 2, 3) if st < 13 - HOLD else (1, 2, 3))]
    n_opt = len(order)
    order += [(st, 0) for st in range(13 - HOLD, 13)]
    NS = 28
    W = cfg.aheadD
    for n in range(W): hload(*order[n], n % NS)
    wr = [(i, T) for i in (1, 2, 3) for T in range(5)]
    cnt = [0]
    addr = []
    addr += ["v_and_b32 v6, 15, v1", "v_lshrrev_b32 v7, 4, v1", "v_mul_u32_u24 v6, 176, v6", "v_lshl_add_u32 v6, v7, 3, v6",
             f"s_mul_i32 s56, {sWAVE}, 3072", "s_add_u32 s56, s56, 65536", "v_add_u32 v6, s56, v6"]
    for n, (st, i) in enumerate(order):
        if n == max(0, n_opt - W):
            A.cond += 1
            A(f"s_cmp_ge_u32 {sWAVE}, 2\ns_cbranch_scc1 {lno}")
            for t, tag in w2_groups(65, 70): A(t, "w2o")
            for ii in range(4): hload(13, ii, 28 + ii)
            A(f"{lno}:")
            A.cond -= 1
        if n == n_opt:
            A.cond += 1
            A(f"s_cmp_ge_u32 {sWAVE}, 2\ns_cbranch_scc1 {lo2}")
            A.wait("g13_3")
            for ii in (1, 2, 3, 0): mm(13, ii, 28 + ii)
            A(f"{lo2}:")
            A.cond -= 1
        while any(tg == f"w2_{st//2}" for t, tg in A.bg): A.sprinkle(1)
        a_, b_ = A.vm_after(f"g{st}_{i}"), A.vm_after(f"w2_{st//2}")
        A.wait(f"w2_{st//2}" if (b_ is not None and (a_ is None or b_ < a_)) else f"g{st}_{i}")
        def extra(T):
            if T == 3 and n % cfg.d_every == 0: A.sprinkle(1)
            if T == 1 and n + W < len(order): hload(*order[n + W], (n + W) % NS)
            if T == 3 and addr and n >= 4: A(addr.pop(0))
            if n >= n_opt:
                cnt[0] += 1
                if cnt[0] >= 3 and cnt[0] % cfg.wr_everyD == 0 and wr:
                    wi, wT = wr.pop(0)
                    A(f"ds_write_b128 v{240+wi}, {vr(ACC+4*(5*wi+wT),4)} offset:{wT*1024}")
        mm(st, i, n % NS, st == 0, extra)
    for wi, wT in wr: A(f"ds_write_b128 v{240+wi}, {vr(ACC+4*(5*wi+wT),4)} offset:{wT*1024}")
    stamp(A, cfg, 43)
    for it in range(3):
        A(f"""
        v_add_u32 v150, {it*64}, v1
        v_mul_u32_u24 v151, 6554, v150
        v_lshrrev_b32 v151, 16, v151
        v_mul_u32_u24 v152, 10, v151
        v_sub_u32 v152, v150, v152
        v_mul_u32_u24 v{154+it}, 176, v151
        v_lshl_add_u32 v{154+it}, v152, 4, v{154+it}
        v_add_u32 v{154+it}, s56, v{154+it}
        v_mul_u32_u24 v{158+it}, 1280, v151
        v_lshl_add_u32 v{158+it}, v152, 4, v{158+it}
        """)
    for i in range(10):
        A(f"v_lshlrev_b32 v{164+2*i}, 16, v{HK+i}\nv_and_b32 v{165+2*i}, 0xffff0000, v{HK+i}")
    A("v_mov_b32 v162, v5\ns_waitcnt lgkmcnt(0)\ns_barrier")
    for k in range(15): A(f"ds_read_b128 {vr(88+4*k,4)}, v240 offset:{k*1024}")
    for k in range(15):
        T = k % 5
        A(f"s_waitcnt lgkmcnt({14-k if k < 10 else 4})" if k <= 10 else f"s_waitcnt lgkmcnt(4)")
        A(f"v_pk_add_f32 {vr(ACC+4*T,2)}, {vr(ACC+4*T,2)}, {vr(88+4*k,2)}")
        A(f"v_pk_add_f32 {vr(ACC+4*T+2,2)}, {vr(ACC+4*T+2,2)}, {vr(90+4*k,2)}")
        if k >= 10:
            A(f"v_pk_fma_f32 {vr(ACC+4*T,2)}, {vr(ACC+4*T,2)}, v[162:163], {vr(164+4*T,2)} op_sel_hi:[1,0,1]")
            A(f"v_pk_fma_f32 {vr(ACC+4*T+2,2)}, {vr(ACC+4*T+2,2)}, v[162:163], {vr(166+4*T,2)} op_sel_hi:[1,0,1]")
            A(f"v_cvt_pk_bf16_f32 v{40+2*T}, v{ACC+4*T}, v{ACC+4*T+1}\nv_cvt_pk_bf16_f32 v{41+2*T}, v{ACC+4*T+2}, v{ACC+4*T+3}")
            A(f"ds_write_b64 v6, {vr(40+2*T,2)} offset:{T*32}")
    A("s_waitcnt lgkmcnt(0)")
    for it in range(3): A(f"ds_read_b128 {vr(52+4*it,4)}, v{154+it}")
    for it in range(3):
        A(f"s_waitcnt lgkmcnt({2-it})")
        if it == 2: A("s_mov_b64 exec, 0xffffffff")
        A(f"buffer_store_dwordx4 {vr(52+4*it,4)}, v{158+it}, {SOUT}, s60 offen{OUTPOL[cfg.outst]}")
    A("s_mov_b64 exec, -1")

def build(cfg):
    global NSMX
    NSMX = cfg.nsmx
    cfg_f5pos[0] = cfg.f5pos
    cfg.ld = {'sc1': ' sc1', 'plain': '', 'nt': ' nt', 'sc0': ' sc0'}.get(cfg.ld, cfg.ld)
    if cfg.mapB != "2x16": cfg.local = 0
    hdr = open("cdna_kernels/" + NAME + ".s.ref").read().split("; Override")[0]
    name = NAME + "_kernel"
    A = Asm()
    ex = "L_exit"
    A(f".text\n.globl {name}\n.p2align 8\n.type {name},@function\n{name}:")
    if cfg.stamps: A(f"v_mov_b32 v{STV}, 0\nv_mov_b32 v{STV+1}, 0")
    stamp(A, cfg, 0)
    prologue(A, cfg, ex)
    phase_P(A, cfg)
    phase_A(A, cfg)
    phase_B(A, cfg)
    phase_C(A, cfg)
    phase_D(A, cfg)
    epoch_advance(A)
    if getattr(cfg, "delay", 0):
        A(f"s_mov_b32 s90, 0\nL_dly:\n" + "v_add_u32 v8, v8, v8\n" * 16 + f"s_add_u32 s90, s90, 1\ns_cmp_lt_u32 s90, {cfg.delay}\ns_cbranch_scc1 L_dly")
    stamp(A, cfg, 62)
    stamp_flush(A, cfg)
    A(f"{ex}:\ns_endpgm")
    softmax_routine(A, NSMX)
    A("L_end:")
    A(f"""
    .section .rodata,"a"
    .p2align 6
    .amdhsa_kernel {name}
    .amdhsa_next_free_vgpr 512
    .amdhsa_next_free_sgpr 102
    .amdhsa_accum_offset 256
    .amdhsa_group_segment_fixed_size 0
    .amdhsa_kernarg_size 80
    .amdhsa_user_sgpr_count 2
    .amdhsa_user_sgpr_kernarg_segment_ptr 1
    .amdhsa_system_sgpr_workgroup_id_x 1
    .end_amdhsa_kernel
    """)
    return hdr + "; @launch grid=(256,1,1) block=(256,1,1) lds=163840\n" + '.amdgcn_target "amdgcn-amd-amdhsa--gfx950"\n' + A.render()

def default_cfg():
    c = Cfg()
    c.outst = 'p'; c.rot = 1; c.x_first = 1; c.x_mid = 3; c.x_late = 9; c.side_at = 1; c.cpf = 1; c.f5pos = 40; c.p2from0 = 1; c.ld = 'sc1'; c.local = 0; c.aheadA = 4; c.nsmx = 12; c.iv_k = 60; c.n_k = 4; c.p2sig = 12; c.iv_p2 = 80; c.n_p2 = 99
    c.n_q = 8; c.n_red = 10; c.n_h2 = 14; c.n_b = 10; c.n_h3 = 10; c.iv_c2 = 110; c.n_c2 = 99; c.n_h4 = 14; c.d_every = 1; c.aheadB = 12; c.aheadC = 5; c.c_from = 7; c.iv_c = 200; c.n_c = 0
    c.aheadD = 12; c.holdD = 8; c.wr_everyD = 2
    return c

if __name__ == "__main__":
    cfg = default_cfg()
    for a in sys.argv[2:]:
        if "=" in a:
            k, v = a.split("=")
            setattr(cfg, k, int(v) if v.lstrip("-").isdigit() else v)
    cfg.stamps = "stamps" in sys.argv
    dst = sys.argv[1] if len(sys.argv) > 1 else "cdna_kernels/" + NAME + ".s"
    open(dst, "w").write(build(cfg))
    print("wrote", dst)
```

```python
import re

REG_RE = re.compile(r'\b([vas])(\d+)\b|\b([vas])\[(\d+):(\d+)\]|\b(vcc|exec|m0|scc)\b')

def regs_of(tok):
    out = set()
    for m in REG_RE.finditer(tok):
        if m.group(1):
            out.add((m.group(1), int(m.group(2))))
        elif m.group(3):
            for i in range(int(m.group(4)), int(m.group(5)) + 1):
                out.add((m.group(3), i))
        else:
            out.add((m.group(6), 0))
    return out

TRANS = ("v_exp_f32", "v_log_f32", "v_rcp_f32", "v_rsq_f32", "v_sqrt_f32", "v_sin_f32", "v_cos_f32")

class Ins:
    __slots__ = ("text", "op", "rd", "wr", "kind", "passes", "srcc", "srcab", "dst", "wide_store", "data", "lds_dma", "dpp")
    def __init__(self, text):
        self.text = text
        t = text.split(";")[0].strip()
        parts = t.split(None, 1)
        self.op = op = parts[0]
        rest = parts[1] if len(parts) > 1 else ""
        ops = [o.strip() for o in rest.split(",")] if rest else []
        self.rd = set(); self.wr = set(); self.kind = "other"; self.passes = 0
        self.srcc = set(); self.srcab = set(); self.dst = set(); self.wide_store = False; self.data = set()
        self.lds_dma = False; self.dpp = ("row_" in rest or "quad_perm" in rest or "_dpp" in op)
        R = regs_of
        if op.startswith("v_mfma"):
            self.kind = "mfma"
            self.passes = 8 if "32x32x16" in op else 4
            self.dst = R(ops[0]); self.wr = set(self.dst)
            self.srcab = R(ops[1]) | R(ops[2]); self.srcc = R(ops[3])
            self.rd = self.srcab | self.srcc
        elif op.startswith("v_"):
            self.kind = "valu"
            if op.startswith("v_cmp"):
                self.wr = R(ops[0]); self.rd = set().union(*[R(o) for o in ops[1:]])
            elif op.startswith("v_permlane") and "swap" in op:
                self.wr = R(ops[0]) | R(ops[1]); self.rd = set(self.wr)
            elif op.startswith(("v_add_co", "v_sub_co", "v_addc_co", "v_subb_co")):
                self.wr = R(ops[0]) | R(ops[1]); self.rd = set().union(*[R(o) for o in ops[2:]])
            else:
                self.wr = R(ops[0]); self.rd = set().union(*[R(o) for o in ops[1:]]) if len(ops) > 1 else set()
                if op.startswith(("v_fmac", "v_dot2c", "v_writelane")) or self.dpp:
                    self.rd |= self.wr
                if op.startswith("v_cndmask") and len(ops) == 3:
                    self.rd.add(("vcc", 0))
        elif op.startswith(("buffer_", "global_")):
            self.kind = "vmem"
            if op in ("buffer_wbl2", "buffer_inv"):
                pass
            elif "store" in op or "atomic" in op:
                if op.startswith("buffer_"):
                    self.data = R(ops[0])
                else:
                    self.data = R(ops[1])
                self.rd = set().union(*[R(o) for o in ops])
                self.wide_store = ("x3" in op or "x4" in op)
            elif re.search(r'\blds\b', rest):
                self.lds_dma = True
                self.rd = set().union(*[R(o) for o in ops]) | {("m0", 0)}
            else:
                self.wr = R(ops[0]); self.rd = set().union(*[R(o) for o in ops[1:]])
        elif op.startswith("ds_"):
            self.kind = "ds"
            if op.startswith(("ds_write", "ds_add")):
                self.rd = set().union(*[R(o) for o in ops])
            else:
                self.wr = R(ops[0]); self.rd = set().union(*[R(o) for o in ops[1:]])
                if "d16" in op:
                    self.rd |= self.wr
        elif op.startswith("s_"):
            self.kind = "salu"
            if op.startswith(("s_cmp", "s_cbranch", "s_branch", "s_waitcnt", "s_barrier", "s_nop", "s_sleep", "s_endpgm", "s_setprio", "s_setpc")):
                self.rd = set().union(*[R(o) for o in ops]) if ops else set()
            else:
                self.wr = R(ops[0]) if ops else set()
                self.rd = set().union(*[R(o) for o in ops[1:]]) if len(ops) > 1 else set()
    def states(self):
        if self.op == "s_nop":
            return int(self.text.split(";")[0].split()[1], 0) + 1
        return 1

def vec(s):
    return {x for x in s if x[0] in "va"}
def sca(s):
    return {x for x in s if x[0] == "s" or x[0] == "vcc"}

def need(p, c):
    n = 0
    if p.kind == "valu":
        w = vec(p.wr)
        if c.kind == "mfma" and (w & c.rd): n = max(n, 2)
        if c.kind == "valu":
            if c.op.startswith("v_permlane") and (w & c.rd): n = max(n, 2)
            if c.dpp and (w & c.rd): n = max(n, 2)
            if c.op.startswith(("v_readfirstlane", "v_readlane")) and (w & c.rd): n = max(n, 1)
        if p.op in TRANS and (w & c.rd) and c.op not in TRANS: n = max(n, 1)
        if p.op in TRANS and (w & c.rd): n = max(n, 1)
        if p.op.startswith("v_dot2"):
            if (w & (c.rd | c.wr)):
                if c.op == p.op and c.kind == "valu":
                    toks = [o.strip() for o in c.text.split(";")[0].split(None, 1)[1].split(",")]
                    ab = regs_of(toks[1]) | regs_of(toks[2])
                    if w & ab: n = max(n, 3)
                else:
                    n = max(n, 3)
        sw = sca(p.wr)
        if sw:
            if c.kind in ("valu", "mfma") and (sw & c.rd): n = max(n, 4 if c.op.startswith(("v_readlane", "v_writelane")) else 2)
            if c.kind == "vmem" and (sw & c.rd): n = max(n, 5)
            if c.kind == "salu" and (sw & c.rd): n = max(n, 1)
            if c.op.startswith("s_cbranch_vcc") and ("vcc", 0) in sw: n = max(n, 1)
    if p.kind == "mfma":
        far = {4: 8, 8: 12}[p.passes]
        if c.kind == "mfma":
            if p.dst & c.srcab: n = max(n, far)
            if p.dst & c.srcc:
                if not (c.srcc == p.dst and c.passes == p.passes): n = max(n, {4: 6, 8: 10}[p.passes])
            if (p.dst & c.dst) and not (c.srcc == p.dst and c.passes == p.passes): n = max(n, {4: 6, 8: 10}[p.passes])
        elif c.kind in ("valu", "vmem", "ds"):
            if p.dst & (c.rd | c.wr): n = max(n, far)
            if c.kind == "valu" and (p.srcc & c.wr): n = max(n, {4: 3, 8: 7}[p.passes])
    if p.kind == "salu" and ("m0", 0) in p.wr and (c.lds_dma): n = max(n, 1)
    if p.kind == "vmem" and p.wide_store and (p.data & c.wr): n = max(n, 2)
    return n

class Asm:
    def __init__(self):
        self.items = []
        self.uid = 0
        self.vm = []
        self.tag = None
        self.cond = 0
        self.bg = []
        self.pace_iv = 0
        self.pace_acc = 0
        self.pace_max = 0
        self._in_bg = False
    def __call__(self, text, tag=None):
        for line in text.split("\n"):
            line = line.strip()
            if not line: continue
            if line.startswith(";") or line.startswith(".") or line.endswith(":"):
                self.items.append(line)
            else:
                ins = Ins(line)
                self.items.append(ins)
                if ins.kind == "vmem" and ins.op not in ("buffer_wbl2", "buffer_inv"):
                    self.vm.append((tag or self.tag, self.cond == 0))
                if ins.op == "s_waitcnt" and "vmcnt(0)" in line and self.cond == 0:
                    self.vm = []
                if self.pace_iv and not self._in_bg and self.cond == 0:
                    if ins.kind == "mfma": self._mf = ins.passes * 4; self.pace_acc += self._mf; self._cover = self._mf - 8
                    else:
                        c = 9 if ins.op in TRANS else 5
                        cov = min(getattr(self, "_cover", 0), c); self._cover = getattr(self, "_cover", 0) - cov
                        self.pace_acc += c - cov
                    if self.pace_acc >= self.pace_iv and self.bg and self.pace_max > 0 and not ins.op.startswith(("s_cmp", "s_bitcmp")):
                        self.pace_acc -= self.pace_iv; self.pace_max -= 1
                        self.sprinkle(1)
    def vm_after(self, tag):
        idx = [i for i, (t, c) in enumerate(self.vm) if t == tag]
        if not idx: return None
        return sum(1 for (t, c) in self.vm[idx[-1] + 1:] if c)
    def wait(self, tag, extra=""):
        n = self.vm_after(tag)
        if n is None or n > 63:
            if extra: self(f"s_waitcnt {extra}")
            return
        self(f"s_waitcnt vmcnt({n}) {extra}".strip())
    def pace(self, iv, nmax=999):
        self.pace_iv = iv; self.pace_acc = iv if iv else 0; self.pace_max = nmax; self._cover = 0
    def sprinkle(self, n=1):
        old = self._in_bg; self._in_bg = True
        for _ in range(n):
            if self.bg:
                text, tag = self.bg.pop(0)
                self(text, tag)
        self._in_bg = old
    def label(self, base):
        self.uid += 1
        return f"L_{base}_{self.uid}"
    def render(self):
        out = []
        hist = []
        nins = 0
        skippable = []
        zero = set(); keep = []
        for it in self.items:
            if isinstance(it, str):
                out.append(it if (it.endswith(":") or it.startswith(".")) else "  " + it)
                if it.endswith(":"):
                    zero.update(id(x) for x in skippable); keep.extend(skippable); skippable = []
                continue
            dist = 0; req = 0
            for p in reversed(hist):
                r = need(p, it) - dist
                if r > req: req = r
                if id(p) not in zero: dist += p.states()
                if dist >= 20: break
            while req > 0:
                k = min(req, 16)
                nop = Ins(f"s_nop {k-1}")
                hist.append(nop); out.append(f"  s_nop {k-1}"); req -= k; nins += 1
                if skippable: skippable.append(nop)
            hist.append(it); out.append("  " + it.text); nins += 1
            if skippable or getattr(self, "_open", False): skippable.append(it)
            if it.op.startswith(("s_cbranch", "s_branch")):
                if not skippable: skippable = [Ins("s_nop 0")]
            if len(hist) > 80: hist = hist[-80:]
        return "\n".join(out) + "\n"
```

```python
import sys
sys.path.insert(0, "dev")
from asmlib import Asm

NAME = "sequential_preLN__linear_kernel_hedgehog__dense_activation_relu__prompt"

WQ  = 0
WO  = WQ + 2621440
W2  = WO + 819200
KVP = W2 + 2211840
OF  = KVP + 256 * 3840
HF  = OF + 2621440
H1F = HF + 2621440
W1  = H1F + 7077888
XF  = W1 + 108 * 20480
XST = XF + 2621440
STT = XST + 131072
CSQ = STT + 131072
CS1 = CSQ + 131072
CSJ = CS1 + 16 * 6912
FLG = (CSJ + 8192 + 4095) // 4096 * 4096
EPOCH = FLG + 7 * 8192
STAMP = 64 << 20
DBGA = 128 << 20
WS_BYTES = 268435456

SWS, SX, SOUT, SSRC, SW1 = "s[28:31]", "s[32:35]", "s[36:39]", "s[40:43]", "s[44:47]"
sWAVE, sR, sC, sNONCE, sRA, sCA = "s48", "s49", "s50", "s51", "s82", "s83"
sLOCAL = "s85"
SC = " sc1"
OUTPOL = {"p": "", "s": " sc1", "n": " nt", "t": " sc0 sc1"}
SPIN = 0x4000

class Cfg:
    stamps = False
    mapA = "8x4"
    mapB = "4x8"

def vr(b, n): return f"v[{b}:{b+n-1}]"
def ar(b, n): return f"a[{b}:{b+n-1}]"

def emit_map(A, kind, r, c):
    if kind == "2x16":
        A(f"s_lshl_b32 {r}, s52, 1\ns_and_b32 s54, s53, 1\ns_add_u32 {r}, {r}, s54\ns_lshr_b32 {c}, s53, 1")
    elif kind == "4x8":
        A(f"s_lshr_b32 {r}, s52, 1\ns_lshl_b32 {r}, {r}, 2\ns_and_b32 s54, s53, 3\ns_add_u32 {r}, {r}, s54")
        A(f"s_and_b32 {c}, s52, 1\ns_lshl_b32 {c}, {c}, 3\ns_lshr_b32 s54, s53, 2\ns_add_u32 {c}, {c}, s54")
    elif kind == "8x4":
        A(f"s_lshr_b32 {r}, s52, 2\ns_lshl_b32 {r}, {r}, 3\ns_and_b32 s54, s53, 7\ns_add_u32 {r}, {r}, s54")
        A(f"s_and_b32 {c}, s52, 3\ns_lshl_b32 {c}, {c}, 2\ns_lshr_b32 s54, s53, 3\ns_add_u32 {c}, {c}, s54")
    else:
        raise ValueError(kind)

def prologue(A, cfg, exit_label):
    A(f"""
    s_cmp_ge_u32 s2, 256
    s_cbranch_scc1 {exit_label}
    s_load_dwordx16 s[8:23], s[0:1], 0
    s_load_dwordx4 s[24:27], s[0:1], 64
    v_and_b32 v1, 63, v0
    v_lshrrev_b32 v2, 6, v0
    s_and_b32 s52, s2, 7
    s_lshr_b32 s53, s2, 3
    v_readfirstlane_b32 {sWAVE}, v2
    """)
    emit_map(A, cfg.mapB, sR, sC)
    emit_map(A, cfg.mapA, sRA, sCA)
    A(f"""
    v_lshlrev_b32 v2, 4, v1
    s_mov_b32 s30, {WS_BYTES}
    s_mov_b32 s31, 0x20000
    s_mov_b32 s34, 2621440
    s_mov_b32 s35, 0x20000
    s_mov_b32 s38, 2621440
    s_mov_b32 s39, 0x20000
    s_mov_b32 s43, 0x20000
    s_mov_b32 s46, {108*20480}
    s_mov_b32 s47, 0x20000
    s_mov_b32 s84, 0x3fb8aa3b
    s_mov_b32 s85, 0
    """)

def prologue2(A):
    A(f"""
    s_waitcnt lgkmcnt(0)
    s_mov_b32 s28, s26
    s_mov_b32 s29, s27
    s_mov_b32 s32, s8
    s_mov_b32 s33, s9
    s_mov_b32 s36, s22
    s_mov_b32 s37, s23
    s_add_u32 s44, s26, {W1}
    s_addc_u32 s45, s27, 0
    s_mov_b32 s56, {EPOCH}
    buffer_load_dword v7, off, {SWS}, s56 sc1
    """)

STV = 244
def stamp(A, cfg, k):
    if cfg.stamps:
        A(f"s_memrealtime s[94:95]\ns_memtime s[96:97]\ns_waitcnt lgkmcnt(0)\nv_writelane_b32 v{STV}, s94, {k}\nv_writelane_b32 v{STV+1}, s96, {k}")

def stamp_flush(A, cfg):
    if cfg.stamps:
        A(f"""
        s_waitcnt vmcnt(0)
        s_memrealtime s[94:95]
        s_waitcnt lgkmcnt(0)
        v_writelane_b32 v{STV}, s94, 63
        s_lshl_b32 s90, s2, 2
        s_add_u32 s90, s90, {sWAVE}
        s_lshl_b32 s90, s90, 8
        s_add_u32 s90, s90, {STAMP}
        v_lshlrev_b32 v5, 2, v1
        buffer_store_dword v{STV}, v5, {SWS}, s90 offen
        s_add_u32 s90, s90, {8<<20}
        buffer_store_dword v{STV+1}, v5, {SWS}, s90 offen
        """)
    if cfg.stamps and getattr(cfg, "dbgout", 0):
        l = A.label("dbo")
        sel = [1, 10, 11, 5, 6, 7, 12, 13, 17, 18, 21, 32, 33, 42, 43, 63]
        A(f"s_cmp_lg_u32 s2, {cfg.dbgout}\ns_cbranch_scc1 {l}\ns_cmp_lg_u32 {sWAVE}, 0\ns_cbranch_scc1 {l}")
        A(f"v_readlane_b32 s90, v{STV}, 0\nv_mov_b32 v8, 0")
        for i, k in enumerate(sel):
            A(f"v_readlane_b32 s91, v{STV}, {k}\ns_sub_u32 s91, s91, s90\nv_writelane_b32 v8, s91, {i}")
        A(f"s_mov_b64 exec, 0xffff\nglobal_store_dword v5, v8, s[24:25]\n{l}:")

def tag_ready(A):
    A(f"v_readfirstlane_b32 {sNONCE}, v7\ns_add_u32 {sNONCE}, {sNONCE}, 16\ns_and_b32 {sNONCE}, {sNONCE}, -16")

def epoch_advance(A):
    l = A.label("ep")
    A.cond += 1
    A(f"""
    s_or_b32 s55, s2, {sWAVE}
    s_cmp_lg_u32 s55, 0
    s_cbranch_scc1 {l}
    v_mov_b32 v6, 0
    v_mov_b32 v7, {sNONCE}
    s_mov_b32 s58, {EPOCH}
    s_mov_b64 exec, 1
    buffer_store_dword v7, v6, {SWS}, s58 offen sc1
    s_mov_b64 exec, -1
    {l}:
    """)
    A.cond -= 1

def either(A, lines, tag=None):
    A.cond += 1
    lines(lambda t: A(t.replace("@", " sc1"), tag))
    A.cond -= 1

def flag_store(A, val=None, local=False):
    A(f"""
    v_mov_b32 v6, s59
    v_mov_b32 v7, {val or sNONCE}
    s_mov_b64 exec, 1
    """)
    if local: either(A, lambda E: E(f"buffer_store_dword v7, v6, {SWS}, s58 offen@"))
    else: A(f"buffer_store_dword v7, v6, {SWS}, s58 offen sc1")
    A("s_mov_b64 exec, -1")

def signal_global(A, hop, fetch_nonce=False):
    l = A.label("sig")
    A.cond += 1
    A(f"s_cmp_lg_u32 {sWAVE}, 0\ns_cbranch_scc1 {l}")
    A(f"""
    s_lshr_b32 s58, s2, 2
    s_lshl_b32 s58, s58, 7
    s_add_u32 s58, s58, {FLG + hop*8192}
    s_and_b32 s59, s2, 3
    s_lshl_b32 s59, s59, 2
    """)
    flag_store(A)
    A(f"{l}:")
    A.cond -= 1

def poll_global(A, hop, R):
    lp, ld = A.label("poll"), A.label("pd")
    A(f"""
    v_lshlrev_b32 v6, 7, v1
    s_mov_b32 s58, {FLG + hop*8192}
    s_mov_b32 s57, 0
    {lp}:
    buffer_load_dwordx4 {vr(R,4)}, v6, {SWS}, s58 offen sc1
    s_add_u32 s57, s57, 1
    s_waitcnt vmcnt(0)
    v_xor_b32 v{R}, {sNONCE}, v{R}
    v_xor_b32 v{R+1}, {sNONCE}, v{R+1}
    v_xor_b32 v{R+2}, {sNONCE}, v{R+2}
    v_xor_b32 v{R+3}, {sNONCE}, v{R+3}
    v_or3_b32 v{R}, v{R}, v{R+1}, v{R+2}
    v_or_b32 v{R}, v{R}, v{R+3}
    v_cmp_ne_u32 vcc, 0, v{R}
    s_cmp_ge_u32 s57, {SPIN}
    s_cbranch_scc1 {ld}
    s_cbranch_vccnz {lp}
    {ld}:
    """)

def wait_global(A, hop, R):
    l = A.label("wt")
    A.cond += 1
    A(f"s_cmp_lg_u32 {sWAVE}, 0\ns_cbranch_scc1 {l}")
    poll_global(A, hop, R)
    A(f"{l}:")
    A.cond -= 1
    A("s_barrier")

def signal_group(A, hop, g, m, tag, local=False):
    l = A.label("sig")
    A.wait(tag)
    A("s_barrier")
    A.cond += 1
    A(f"""
    s_cmp_lg_u32 {sWAVE}, 0
    s_cbranch_scc1 {l}
    s_lshl_b32 s58, {g}, 7
    s_add_u32 s58, s58, {FLG + hop*8192}
    s_lshl_b32 s59, {m}, 2
    """)
    flag_store(A, None, local)
    A(f"{l}:")
    A.cond -= 1

def wait_group(A, hop, g):
    l, lp, ld = A.label("wt"), A.label("poll"), A.label("pd")
    A.cond += 1
    A(f"""
    s_cmp_lg_u32 {sWAVE}, 0
    s_cbranch_scc1 {l}
    s_lshl_b32 s58, {g}, 7
    s_add_u32 s58, s58, {FLG + hop*8192}
    v_lshlrev_b32 v6, 2, v1
    s_mov_b64 exec, 0xffff
    s_mov_b32 s57, 0
    {lp}:
    buffer_load_dword v7, v6, {SWS}, s58 offen sc1
    s_add_u32 s57, s57, 1
    s_waitcnt vmcnt(0)
    v_cmp_ne_u32 vcc, {sNONCE}, v7
    s_cmp_ge_u32 s57, {SPIN}
    s_cbranch_scc1 {ld}
    s_cbranch_vccnz {lp}
    {ld}:
    s_mov_b64 exec, -1
    {l}:
    """)
    A.cond -= 1
    A("s_barrier")


SIDE_LDS = 32 * 1024
SD, SDV, SDL, SDA, SDB = 210, 203, 204, 206, 208
SSRC_OFF = (8, 9, 10, 11, 12)
def side_params(A):
    lwo, le = A.label("swo"), A.label("send")
    A(f"""
    v_bfe_u32 v{SDA}, v1, 3, 2
    v_lshrrev_b32 v207, 5, v1
    s_cmp_ge_u32 s65, 864
    s_cbranch_scc1 {lwo}
    s_cmp_lt_u32 s65, 432
    s_cselect_b32 s40, s18, s20
    s_cselect_b32 s41, s19, s21
    s_mov_b32 s42, 2211840
    s_mov_b32 s60, 1280
    s_cselect_b32 s60, 3456, s60
    s_mov_b32 s71, 55296
    s_cselect_b32 s71, 20480, s71
    s_cselect_b32 s55, 0, 432
    s_mov_b32 s56, 19419
    s_cselect_b32 s56, 52429, s56
    s_mov_b32 s57, 216
    s_cselect_b32 s57, 80, s57
    s_mov_b32 s73, {W2}
    s_cselect_b32 s73, {W1}, s73
    s_sub_u32 s74, s65, s55
    s_and_b32 s58, s74, 15
    s_mul_i32 s58, s58, 6912
    s_lshr_b32 s59, s74, 4
    s_lshl_b32 s59, s59, 8
    s_add_u32 s58, s58, s59
    s_add_u32 s72, s58, {CS1}
    s_mul_i32 s74, s74, 5
    v_mad_u32_u24 v{SDA}, v{SDA}, s60, v205
    s_lshl_b32 s75, s71, 2
    s_lshl_b32 s60, s60, 2
    s_cmp_lt_u32 s65, 432
    s_cselect_b32 s13, 52, 37
    s_cselect_b32 s14, 5, 7
    s_cselect_b32 s15, 2, 3
    """)
    for i in range(5):
        A(f"""
        s_mul_i32 s58, s74, s56
        s_lshr_b32 s58, s58, 22
        s_mul_i32 s59, s58, s57
        s_sub_u32 s59, s74, s59
        s_mul_i32 s{66+i}, s58, s75
        s_lshl_b32 s55, s59, 8
        s_add_u32 s55, s55, s73
        s_add_u32 s{66+i}, s{66+i}, s55
        s_and_b32 s55, s59, 3
        s_lshr_b32 s59, s59, 2
        s_mul_i32 s86, s59, s13
        s_lshr_b32 s86, s86, 8
        s_mul_i32 s86, s86, s14
        s_sub_u32 s86, s59, s86
        s_cmp_eq_u32 s86, s15
        s_cselect_b32 s86, 1, 0
        s_cselect_b32 s87, 1, 4
        s_lshl_b32 s55, s55, s86
        s_lshl3_add_u32 s59, s59, s55
        s_mul_i32 s59, s59, s60
        s_mul_i32 s87, s87, s60
        s_lshl_b32 s58, s58, 7
        s_add_u32 s{SSRC_OFF[i]}, s59, s58
        v_mad_u32_u24 v{SD+4*i}, v207, s87, v{SDA}
        s_add_u32 s74, s74, 1
        """)
    A(f"""
    s_branch {le}
    {lwo}:
    s_mov_b32 s40, s14
    s_mov_b32 s41, s15
    s_mov_b32 s42, 819200
    s_mov_b32 s71, 20480
    s_sub_u32 s74, s65, 864
    s_lshr_b32 s58, s74, 4
    s_and_b32 s59, s74, 15
    s_mul_i32 s66, s58, {4*20480}
    s_mul_i32 s55, s59, 1280
    s_add_u32 s66, s66, s55
    s_add_u32 s66, s66, {WO}
    s_mul_i32 s8, s59, {40*1280}
    s_lshl_b32 s58, s58, 7
    s_add_u32 s8, s8, s58
    v_mul_u32_u24 v{SDA}, 1280, v{SDA}
    v_add_u32 v{SDA}, v{SDA}, v205
    v_mul_u32_u24 v207, 5120, v207
    """)
    for i, r0 in enumerate((0, 8, 16, 20, 28)):
        A(f"v_mad_u32_u24 v{SD+4*i}, v207, {5 if i == 2 else 1}, v{SDA}")
        if i: A(f"s_add_u32 s{SSRC_OFF[i]}, s8, {r0*1280}\ns_add_u32 s{66+i}, s66, {256*i}")
    A(f"""
    {le}:
    v_lshrrev_b32 v207, 4, v1
    v_and_b32 v{SDL}, 15, v1
    v_lshlrev_b32 v{SDL}, 4, v{SDL}
    v_mad_u32_u24 v{SDV}, v207, s71, v{SDL}
    v_lshlrev_b32 v{SDL}, 2, v1
    s_mul_i32 s55, {sWAVE}, 5120
    s_add_u32 s55, s55, {SIDE_LDS}
    v_add_u32 v207, s55, v2
    """)

def side_loads(A):
    for i in range(5):
        A(f"buffer_load_dwordx4 {vr(SD+4*i,4)}, v{SD+4*i}, {SSRC}, s{SSRC_OFF[i]} offen", "side")

def side_process(A, hook=None):
    l = A.label("nocs")
    A.wait("side")
    for grp in ((0, 1, 2, 3, 4),):
        for g in grp: A(f"ds_write_b128 v207, {vr(SD+4*g,4)} offset:{g*1024}")
        A("s_waitcnt lgkmcnt(0)")
        for g in grp:
            A(f"ds_read_b64_tr_b16 v[{SD+4*g}:{SD+1+4*g}], v5 offset:{g*1024}")
            A(f"ds_read_b64_tr_b16 v[{SD+2+4*g}:{SD+3+4*g}], v5 offset:{g*1024+512}")
        if hook: hook()
        for n, g in enumerate(grp):
            A(f"s_waitcnt lgkmcnt({2*(len(grp)-1-n)})")
            A(f"buffer_store_dwordx4 {vr(SD+4*g,4)}, v{SDV}, {SWS}, s{66+g} offen{SC}", "sst")
    A.cond += 1
    A(f"s_cmp_ge_u32 s65, 432\ns_cbranch_scc1 {l}\nv_mov_b32 v176, 0\nv_mov_b32 v177, 0")
    for k in range(20): A(f"v_dot2c_f32_bf16 v{176+k%2}, s79, v{SD+k}")
    A(f"v_add_f32 v176, v176, v177\nbuffer_store_dword v176, v{SDL}, {SWS}, s72 offen{SC}\n{l}:")
    A.cond -= 1

def allreduce_16_32(A, pairs):
    for sw in ("v_permlane16_swap_b32", "v_permlane32_swap_b32"):
        for v, t in pairs: A(f"v_mov_b32 v{t}, v{v}")
        for v, t in pairs: A(f"{sw} v{v}, v{t}")
        for v, t in pairs: A(f"v_add_f32 v{v}, v{v}, v{t}")

def stats_finish(A, vs, vq, vt):
    A(f"""
    v_mul_f32 v{vs}, 0x3acccccd, v{vs}
    v_mul_f32 v{vq}, 0x3acccccd, v{vq}
    v_fma_f32 v{vt}, -v{vs}, v{vs}, v{vq}
    v_max_f32 v{vt}, 0, v{vt}
    v_add_f32 v{vt}, 0x3727c5ac, v{vt}
    v_rsq_f32 v{vt}, v{vt}
    v_mul_f32 v{vq}, -v{vs}, v{vt}
    v_mov_b32 v{vs}, v{vt}
    """)


WM, WLf = 8, 20
ACK, ACV, ACL, ACQ = 32, 48, 64, 80
CSF = 96
U = 112
PP, PL = 124, 140
EP, EN = 156, 176
PH = 196
VV = 156
QL = 216
TM = 218
RSTD, LSC, MF = 230, 232, 236
aPKW, aTRA0, aTRA1, aTRB0, aTRB1, aKVS, aKVL, aKVF, aOST, aZ = range(246, 256)
aKVF2, aHW, aHR, aWM, aWL, aGRP = 234, 235, 240, 241, 242, 243
LOC_LDS = 87 * 1024
PKV_LDS = 88 * 1024
KVF_LDS = 150 * 1024
HOLE_LDS = 120 * 1024
HOLE2_LDS = 158 * 1024
XR, WO25, HK = 230, 240, 246
WA0, WA1 = 160, 208

def split_hi_lo(A, src, hi, lo, t):
    A(f"""
    v_cvt_pk_bf16_f32 v{hi}, v{src}, 0
    v_lshlrev_b32 v{t}, 16, v{hi}
    v_sub_f32 v{t}, v{src}, v{t}
    v_cvt_pk_bf16_f32 v{lo}, v{t}, 0
    """)

XROW_LDS = 16 * 1024
XS_LDS = 64 * 1024
def phase_P(A, cfg):
    lF = A.label("fl")
    NS = cfg.nself
    A(f"""
    v_lshrrev_b32 v3, 3, v1
    v_and_b32 v4, 7, v1
    s_mov_b32 s79, 0x3f803f80
    s_lshl_b32 s64, {sWAVE}, 12
    v_and_b32 v8, 15, v1
    v_min_u32 v8, 14, v8
    v_mul_u32_u24 v9, 52, v8
    v_lshrrev_b32 v9, 8, v9
    v_mul_u32_u24 v9, {1280 - 80}, v9
    v_lshl_add_u32 v8, v8, 4, v9
    v_lshrrev_b32 v10, 4, v1
    s_mul_i32 s55, {sWAVE}, 12
    v_add_u32 v9, s55, v10
    s_mul_i32 s61, {sRA}, {40*3840}
    s_mul_i32 s55, {sCA}, 80
    s_add_u32 s61, s61, s55
    s_mul_i32 s62, {sWAVE}, 3072
    s_mov_b32 m0, s62
    s_mov_b32 s42, 2457600
    s_movk_i32 s56, 3840
    s_lshl_b32 s63, {sRA}, 4
    s_add_u32 s63, s63, {sCA}
    s_mul_i32 s60, s63, 10240
    s_add_u32 s60, s60, s62
    s_mov_b32 s78, 0
    """)
    for i in range(3):
        A(f"v_add_u32 v11, {4*i}, v9\nv_min_u32 v11, 39, v11\nv_mad_u32_u24 v{17+i}, v11, s56, v8")
    prologue2(A)
    A("s_mov_b32 s40, s10\ns_mov_b32 s41, s11")
    for i in range(3):
        A(f"buffer_load_dwordx4 v{17+i}, {SSRC}, s61 offen lds" if i == 0 else f"s_add_u32 m0, m0, 1024\ns_nop 0\nbuffer_load_dwordx4 v{17+i}, {SSRC}, s61 offen lds", "crit")
    A(f"s_add_u32 m0, s62, {XROW_LDS}\ns_mov_b32 s40, s12")
    for i in range(3): A(f"buffer_load_dwordx4 v2, {SX}, s60 offen offset:{i*1024} lds", "crit")
    A(f"""
    s_mov_b32 s41, s13
    s_mov_b32 s42, 25600
    s_mul_i32 s61, {sCA}, 1600
    s_mov_b32 m0, 12288
    v_mov_b32 v32, 0
    v_mov_b32 v33, 0
    v_mov_b32 v34, 0
    v_mov_b32 v35, 0
    v_add_u32 v36, 14336, v2
    """)
    A(f"buffer_load_dwordx4 v2, {SSRC}, s61 offen lds\nbuffer_load_dwordx4 v2, {SSRC}, s61 offen offset:1024 lds", "crit")
    if cfg.cpf:
        A(f"""
        s_getpc_b64 s[56:57]
        L_pc:
        s_sub_u32 s56, s56, L_pc - {NAME}_kernel
        s_subb_u32 s57, s57, 0
        s_lshr_b32 s55, s2, 3
        s_lshl_b32 s55, s55, 2
        s_add_u32 s55, s55, {sWAVE}
        s_lshl_b32 s55, s55, 9
        v_lshl_add_u32 v37, v1, 3, s55
        v_min_u32 v37, L_end - {NAME}_kernel - 4, v37
        global_load_dword v209, v37, s[56:57]
        """)
    def PREP():
        A(f"""
    v_bfe_u32 v17, v1, 2, 2
    v_lshrrev_b32 v18, 5, v1
    v_lshl_add_u32 v17, v18, 3, v17
    v_lshlrev_b32 v17, 8, v17
    v_bfe_u32 v19, v1, 4, 1
    v_bfe_u32 v20, v1, 1, 1
    v_lshl_add_u32 v19, v19, 1, v20
    v_and_b32 v20, 1, v1
    v_mul_u32_u24 v20, 40, v20
    v_add_u32 v17, v17, v20
    s_add_u32 s55, {sWAVE}, 1
    s_and_b32 s55, s55, 3
    s_mul_i32 s55, s55, 80
    v_lshl_add_u32 v21, v19, 3, s55
    v_min_u32 v19, 2, v19
    v_mul_u32_u24 v22, 80, v19
    v_add_u32 v22, 32, v22
    s_cmp_eq_u32 {sWAVE}, 2
    s_cselect_b64 vcc, -1, 0
    v_cndmask_b32 v21, v21, v22, vcc
    v_add_u32 v21, v17, v21
    v_and_b32 v19, 31, v1
    v_lshlrev_b32 v23, 2, v19
    v_lshlrev_b32 v19, 4, v19
    s_lshl_b32 s86, {sWAVE}, 10
    s_mov_b32 s87, 3072
    s_cmp_eq_u32 {sWAVE}, 3
    s_cselect_b32 s86, 122880, s86
    s_cselect_b32 s87, 1024, s87
    s_mul_i32 s55, {sCA}, 163840
    s_add_u32 s86, s86, s55
    s_lshl_b32 s90, {sCA}, 4
    s_add_u32 s90, s90, {sRA}
    s_lshl_b32 s90, s90, 2
    s_add_u32 s90, s90, {sWAVE}
    s_lshl_b32 s90, s90, 7
    s_add_u32 s90, s90, {CSQ}
    s_mul_i32 s55, {sRA}, 5
    v_add_u32 v18, s55, v18
    """)
        for i in range(3):
            A(f"""
        v_add_u32 v20, {2*i}, v18
        v_and_b32 v22, 1, v20
        v_lshl_add_u32 v22, v22, 9, v19
        v_lshrrev_b32 v20, 1, v20
        v_mad_u32_u24 v{24+i}, v20, s87, v22
        """)
        A(f"""
    v_lshrrev_b32 v12, 4, v1
    v_and_b32 v27, 3, v1
    v_lshlrev_b32 v27, 3, v27
    v_lshl_add_u32 v27, v12, 5, v27
    v_bfe_u32 v28, v1, 3, 1
    v_lshlrev_b32 v28, 6, v28
    v_xor_b32 v27, v27, v28
    v_bfe_u32 v28, v1, 2, 2
    v_lshl_add_u32 v5, v28, 7, v27
    s_mul_i32 s55, {sWAVE}, 5120
    s_add_u32 s55, s55, {SIDE_LDS}
    v_add_u32 v5, s55, v5
    v_mov_b32 v56, 0
    v_mov_b32 v57, 0
    """)
    A(f"""
    ds_write_b128 v36, v[32:35]
    v_xor_b32 v94, v4, v10
    v_mul_u32_u24 v95, 1280, v3
    v_lshl_add_u32 v94, v94, 4, v95
    v_xor_b32 v95, 64, v94
    s_lshl_b32 s77, {sRA}, 2
    s_add_u32 s77, s77, {sWAVE}
    s_mul_i32 s77, s77, {32*1280}
    v_and_b32 v10, 1, v10
    v_lshlrev_b32 v10, 2, v10
    v_xor_b32 v10, v4, v10
    v_lshlrev_b32 v205, 4, v10
    s_lshl_b32 s65, s2, 2
    s_add_u32 s65, s65, {sWAVE}
    """)
    if cfg.addr_early: a_addresses(A)
    side_params(A)
    if cfg.side_at == 0: side_loads(A)
    PREP()
    NR = -(-(80 - 8 * NS) // 32)
    A(f"""
    v_mul_u32_u24 v60, 1280, v4
    s_mul_i32 s55, {sWAVE}, {8*NR}
    s_add_u32 s55, s55, {8*NS}
    v_add_u32 v61, s55, v3
    v_lshl_add_u32 v60, v61, 4, v60
    s_lshr_b32 s55, s63, 2
    s_mul_i32 s60, s55, 40960
    s_and_b32 s55, s63, 3
    s_lshl_b32 s55, s55, 7
    s_add_u32 s60, s60, s55
    s_add_u32 s60, s60, {XF}
    v_mov_b32 v63, 0x7fffffff
    """)
    for i in range(NR):
        A(f"""
        v_add_u32 v62, {8*i}, v61
        v_cmp_gt_u32 vcc, 80, v62
        v_lshlrev_b32 v62, 9, v62
        v_lshl_add_u32 v62, v4, 4, v62
        v_cndmask_b32 v{64+i}, v63, v62, vcc
        """)
    A(f"""
    v_lshrrev_b32 v62, 5, v1
    s_lshl_b32 s55, {sWAVE}, 1
    v_add_u32 v62, s55, v62
    v_and_b32 v68, 7, v1
    v_lshlrev_b32 v68, 3, v68
    v_lshl_add_u32 v68, v62, 6, v68
    v_mul_u32_u24 v62, 1280, v62
    v_and_b32 v63, 31, v1
    v_lshl_add_u32 v67, v63, 4, v62
    s_lshl_b32 s61, s63, 9
    s_add_u32 s61, s61, {XST}
    v_mov_b32 v92, 0
    v_mov_b32 v93, 0
    v_mov_b32 v88, 0
    v_mov_b32 v89, 0
    v_mov_b32 v90, 0
    v_mov_b32 v91, 0
    """)
    stamp(A, cfg, 1)
    A.wait("crit", "lgkmcnt(0)")
    A("s_barrier")
    tag_ready(A)
    stamp(A, cfg, 10)
    for i in range(3):
        R = 32 + 4 * i
        A(f"ds_read_b64_tr_b16 v[{R}:{R+1}], v21 offset:{16*i*256}")
        A(f"ds_read_b64_tr_b16 v[{R+2}:{R+3}], v21 offset:{(16*i+4)*256}")
    for i in range(3):
        if i == 2: A("s_mov_b64 exec, 0xffffffff")
        A(f"s_waitcnt lgkmcnt({4 - 2*i})")
        A(f"buffer_store_dwordx4 v[{32+4*i}:{35+4*i}], v{24+i}, {SWS}, s86 offen{SC}", "cst")
    for i in (2, 0, 1):
        for j in range(4): A(f"v_dot2c_f32_bf16 v{56+j%2}, s79, v{32+4*i+j}")
        if i == 2: A("s_mov_b64 exec, -1")
    A("""
    v_add_f32 v56, v56, v57
    v_mov_b32 v58, v56
    v_permlane32_swap_b32 v56, v58
    v_add_f32 v56, v56, v58
    s_mov_b64 exec, 0xffffffff
    """)
    A(f"buffer_store_dword v56, v23, {SWS}, s90 offen{SC}", "cst")
    A("s_mov_b64 exec, -1")
    for i in range(NR): A(f"ds_read_b128 {vr(44+4*i,4) if i < 3 else ''}, v60 offset:{XROW_LDS + 128*i}")
    A(f"""
    ds_read_b128 v[80:83], v67 offset:{XROW_LDS}
    ds_read_b128 v[84:87], v67 offset:{XROW_LDS + 512}
    s_mov_b32 exec_lo, 0xffff
    s_mov_b32 exec_hi, 0xffff
    ds_read_b128 v[88:91], v67 offset:{XROW_LDS + 1024}
    s_mov_b64 exec, -1
    """)
    for i in range(NR):
        A(f"s_waitcnt lgkmcnt({NR + 2 - i})")
        A(f"buffer_store_dwordx4 {vr(44+4*i,4)}, v{64+i}, {SWS}, s60 offen{SC}", "cst")
    A("s_waitcnt lgkmcnt(0)")
    for k in range(12):
        A(f"v_dot2c_f32_bf16 v92, s79, v{80+k}\nv_dot2c_f32_bf16 v93, v{80+k}, v{80+k}")
    for r in (1, 2, 4, 8):
        A(f"v_add_f32_dpp v92, v92, v92 row_ror:{r} row_mask:0xf bank_mask:0xf\nv_add_f32_dpp v93, v93, v93 row_ror:{r} row_mask:0xf bank_mask:0xf")
    A(f"""
    v_mov_b32 v80, v92
    v_mov_b32 v81, v93
    v_permlane16_swap_b32 v92, v80
    v_permlane16_swap_b32 v93, v81
    v_add_f32 v92, v92, v80
    v_add_f32 v93, v93, v81
    v_mul_f32 v92, 0xbacccccd, v92
    v_mul_f32 v93, 0x3acccccd, v93
    v_fma_f32 v93, -v92, v92, v93
    v_max_f32 v93, 0, v93
    v_add_f32 v93, 0x3727c5ac, v93
    v_rsq_f32 v93, v93
    s_mov_b32 exec_lo, 0xff
    s_mov_b32 exec_hi, 0xff
    """)
    A(f"buffer_store_dwordx2 v[92:93], v68, {SWS}, s61 offen{SC}", "cst")
    A("s_mov_b64 exec, -1")
    stamp(A, cfg, 2)
    def xchunk(j):
        A(f"s_add_u32 m0, s64, {XS_LDS + j*16384}\ns_add_u32 s61, s77, {j*128}")
        for i in range(4):
            A(f"buffer_load_dwordx4 v{94 + i % 2}, {SX}, s61 offen lds", f"x{j}")
            if i < 3: A(f"s_add_u32 m0, m0, 1024\ns_add_u32 s61, s61, {8*1280}")
    for j in range(cfg.x_mid): xchunk(j)
    if cfg.side_at == 1: side_loads(A)
    if not cfg.addr_early: a_addresses(A)
    for d in range(20):
        op = "ds_read_u16_d16_hi" if d % 2 else "ds_read_u16"
        A(f"{op} v{156 + d}, v{aWM} offset:{d*40}\n{op} v{176 + d}, v{aWL} offset:{d*40}")
    A("s_waitcnt lgkmcnt(0)")
    for i in range(10): A(f"v_or_b32 v{WM+i}, v{156+2*i}, v{157+2*i}\nv_or_b32 v{WLf+i}, v{176+2*i}, v{177+2*i}")
    for r in (WM+10, WM+11, WLf+10, WLf+11): A(f"v_mov_b32 v{r}, 0")
    A.wait("cst")
    stamp(A, cfg, 11)
    A("s_barrier")
    A.cond += 1
    A(f"""
    s_cmp_lg_u32 {sWAVE}, 0
    s_cbranch_scc1 {lF}
    s_lshl_b32 s58, {sCA}, 7
    s_lshl_b32 s59, {sRA}, 2
    s_add_u32 s58, s58, s59
    s_lshl_b32 s59, {sRA}, 7
    s_lshl_b32 s55, {sCA}, 2
    s_add_u32 s59, s59, s55
    s_add_u32 s59, s59, 2048
    v_mov_b32 v6, s58
    v_mov_b32 v7, {sNONCE}
    v_writelane_b32 v6, s59, 1
    s_mov_b32 s58, {FLG}
    s_mov_b64 exec, 3
    buffer_store_dword v7, v6, {SWS}, s58 offen sc1
    s_mov_b64 exec, -1
    {lF}:
    """)
    A.cond -= 1
    stamp(A, cfg, 3)
    for j in range(cfg.x_mid, NS): xchunk(j)
    if cfg.side_at == 2: side_loads(A)
    A(f"""
    s_lshl_b32 s58, {sCA}, 7
    s_lshl_b32 s59, {sRA}, 7
    s_add_u32 s59, s59, {2048 - 64}
    v_mov_b32 v6, s58
    v_mov_b32 v7, s59
    v_cmp_gt_u32 vcc, 16, v1
    v_and_b32 v60, 31, v1
    s_mov_b32 s58, {FLG}
    v_cndmask_b32 v6, v7, v6, vcc
    v_lshl_add_u32 v6, v60, 2, v6
    """)
    look = lambda: A(f"buffer_load_dword v7, v6, {SWS}, s58 offen sc1", "pl")
    if cfg.side_pr == 0: side_process(A, look)
    stamp(A, cfg, 4)
    A.wait(f"x{NS-1}")
    cur = None
    for j in range(NS):
        o = XS_LDS + j * 16384
        if o >> 16 != cur:
            cur = o >> 16
            for q in range(4): A(f"v_add_u32 v{116+q}, {cur << 16}, v{112+q}")
        for sp in range(4): A(f"ds_read_b128 {ar(16*j+4*sp,4)}, v{116+sp} offset:{o & 0xffff}")
    if cfg.side_pr == 1: side_process(A, look)
    A("v_add_u32 v3, 0x10000, v2\nv_add_u32 v4, 0x20000, v2\ns_waitcnt lgkmcnt(0)")
    stamp(A, cfg, 6)
    l, lp, ld = A.label("wt"), A.label("poll"), A.label("pd")
    A.wait("pl")
    A.cond += 1
    A(f"""
    s_cmp_lg_u32 {sWAVE}, 0
    s_cbranch_scc1 {l}
    s_mov_b32 s57, 0
    s_mov_b64 exec, 0xffffffff
    v_cmp_ne_u32 vcc, {sNONCE}, v7
    s_cbranch_vccz {ld}
    {lp}:
    buffer_load_dword v7, v6, {SWS}, s58 offen sc1
    s_add_u32 s57, s57, 1
    s_waitcnt vmcnt(0)
    v_cmp_ne_u32 vcc, {sNONCE}, v7
    s_cmp_ge_u32 s57, {SPIN}
    s_cbranch_scc1 {ld}
    s_cbranch_vccnz {lp}
    {ld}:
    s_mov_b64 exec, -1
    {l}:
    """)
    A.cond -= 1
    A("s_barrier")

def a_addresses(A):
    A(f"""
    v_and_b32 v192, 31, v1
    v_lshrrev_b32 v193, 5, v1
    s_lshl_b32 s90, {sWAVE}, 5
    v_add_u32 v194, s90, v192
    v_lshl_add_u32 v194, v193, 7, v194
    v_lshlrev_b32 v194, 7, v194
    v_add_u32 v194, {PKV_LDS}, v194
    v_bfe_u32 v195, v1, 1, 1
    v_lshlrev_b32 v195, 2, v195
    v_bfe_u32 v196, v1, 2, 1
    v_lshl_add_u32 v195, v196, 1, v195
    v_and_b32 v196, 1, v1
    v_add_u32 v195, v195, v196
    v_lshl_add_u32 v{aPKW}, v195, 4, v194
    v_mul_u32_u24 v194, 384, v193
    v_lshl_add_u32 v{aKVS}, v192, 4, v194
    s_lshr_b32 s90, {sWAVE}, 1
    s_and_b32 s6, {sWAVE}, 1
    s_lshl_b32 s86, s90, 14
    s_add_u32 s86, s86, {PKV_LDS}
    v_bfe_u32 v192, v1, 2, 2
    v_lshl_add_u32 v192, v193, 3, v192
    v_lshlrev_b32 v192, 7, v192
    v_add_u32 v192, s86, v192
    v_and_b32 v194, 1, v1
    v_lshl_add_u32 v192, v194, 3, v192
    v_bfe_u32 v194, v1, 4, 1
    v_bfe_u32 v195, v1, 1, 1
    v_lshl_add_u32 v194, v194, 1, v195
    v_bfe_u32 v195, v1, 3, 1
    v_lshlrev_b32 v195, 2, v195
    v_bfe_u32 v196, v1, 2, 1
    v_add_u32 v195, v195, v196
    s_lshl_b32 s87, s6, 2
    v_add_u32 v196, s87, v194
    v_add_u32 v197, 5, v194
    v_min_u32 v197, 7, v197
    v_xor_b32 v196, v196, v195
    v_xor_b32 v197, v197, v195
    v_lshl_add_u32 v{aTRA0}, v196, 4, v192
    v_lshl_add_u32 v{aTRB0}, v197, 4, v192
    v_xor_b32 v196, 2, v196
    v_xor_b32 v197, 2, v197
    v_lshl_add_u32 v{aTRA1}, v196, 4, v192
    v_lshl_add_u32 v{aTRB1}, v197, 4, v192
    s_lshl_b32 s3, {sCA}, 4
    s_add_u32 s3, s3, {sRA}
    s_mul_i32 s3, s3, 3840
    s_mul_i32 s87, s90, 1920
    s_add_u32 s3, s3, s87
    s_mul_i32 s87, s6, {4*384}
    s_add_u32 s3, s3, s87
    s_add_u32 s3, s3, {KVP}
    v_min_u32 v199, 239, v0
    v_lshlrev_b32 v{aKVL}, 4, v199
    v_mul_u32_u24 v192, 2731, v199
    v_lshrrev_b32 v192, 16, v192
    v_mul_u32_u24 v193, 24, v192
    v_sub_u32 v193, v199, v193
    v_cmp_le_u32 s[90:91], 5, v192
    v_subrev_u32 v195, 5, v192
    v_cndmask_b32 v195, v192, v195, s[90:91]
    v_cndmask_b32 v196, 0, 1, s[90:91]
    v_lshrrev_b32 v197, 4, v193
    v_and_b32 v198, 15, v193
    v_mad_u32_u24 v195, v197, 5, v195
    v_lshlrev_b32 v195, 10, v195
    v_lshrrev_b32 v197, 2, v198
    v_lshlrev_b32 v197, 3, v197
    v_and_b32 v198, 3, v198
    v_add_u32 v197, v197, v198
    v_mad_u32_u24 v197, v196, 36, v197
    v_lshl_add_u32 v195, v197, 4, v195
    v_add_u32 v{aKVF}, {KVF_LDS}, v195
    s_mul_i32 s4, {sCA}, {16*3840}
    s_add_u32 s4, s4, {KVP}
    v_and_b32 v192, 15, v1
    v_bfe_u32 v193, v1, 4, 1
    v_lshrrev_b32 v194, 5, v1
    v_mul_u32_u24 v193, 20480, v193
    v_mul_u32_u24 v194, 768, v194
    v_lshl_add_u32 v192, v192, 4, v193
    v_add_u32 v{aOST}, v192, v194
    s_lshl_b32 s5, {sRA}, 2
    s_add_u32 s5, s5, {sWAVE}
    s_mul_i32 s5, s5, 40960
    s_mul_i32 s90, {sCA}, 1280
    s_add_u32 s5, s5, s90
    s_add_u32 s5, s5, {OF}
    v_mul_u32_u24 v{aZ}, 40, v0
    v_add_u32 v{aZ}, {KVF_LDS}, v{aZ}
    s_mul_i32 s53, {sCA}, 163840
    s_lshl_b32 s7, {sWAVE}, 10
    s_add_u32 s53, s53, s7
    s_add_u32 s53, s53, {WQ}
    s_sub_u32 s101, s53, s7
    s_add_u32 s101, s101, 122880
    s_lshl_b32 s90, s78, 12
    s_add_u32 s100, s53, s90
    s_add_u32 s100, s100, 122880
    s_mul_i32 s90, s78, 12288
    s_add_u32 s53, s53, s90
    s_lshl_b32 s54, {sCA}, 13
    s_add_u32 s54, s54, {CSQ}
    s_lshl_b32 s90, {sWAVE}, 11
    s_add_u32 s54, s54, s90
    s_lshl_b32 s90, {sWAVE}, 9
    s_add_u32 s90, s90, {HOLE_LDS}
    v_and_b32 v192, 31, v1
    v_lshlrev_b32 v{aHW}, 4, v192
    v_add_u32 v{aHW}, s90, v{aHW}
    v_lshlrev_b32 v{aHR}, 2, v192
    v_add_u32 v{aHR}, {HOLE_LDS}, v{aHR}
    s_mul_i32 s88, {sC}, {7*20480}
    s_add_u32 s88, s88, s7
    s_mov_b32 s89, s7
    s_lshr_b32 s90, {sC}, 1
    s_mul_i32 s92, s90, {5*20480}
    s_mul_i32 s91, {sWAVE}, 5120
    s_add_u32 s92, s92, s91
    s_add_u32 s92, s92, {WO}
    s_mul_i32 s52, {sWAVE}, 14
    s_cmp_eq_u32 {sWAVE}, 3
    s_cselect_b32 s52, 41, s52
    s_lshl_b32 s52, s52, 10
    s_mul_i32 s93, s90, {5*55296}
    s_add_u32 s93, s93, s52
    s_add_u32 s93, s93, {W2}
    
    v_and_b32 v116, 31, v1
    v_lshrrev_b32 v117, 5, v1
    v_bfe_u32 v118, v1, 1, 3
    v_xor_b32 v117, v117, v118
    v_lshlrev_b32 v116, 7, v116
    v_add_u32 v116, s64, v116
    v_lshl_add_u32 v112, v117, 4, v116
    v_xor_b32 v113, 32, v112
    v_xor_b32 v114, 64, v112
    v_xor_b32 v115, 96, v112
    s_lshl_b32 s16, {sRA}, 2
    s_add_u32 s16, s16, {sWAVE}
    s_lshl_b32 s17, s16, 11
    s_add_u32 s17, s17, {XST}
    s_mul_i32 s16, s16, 40960
    s_add_u32 s16, s16, {XF}
    v_and_b32 v120, 31, v1
    v_lshlrev_b32 v120, 6, v120
    v_and_b32 v192, 31, v1
    v_lshrrev_b32 v193, 5, v1
    v_bfe_u32 v194, v1, 2, 1
    v_lshrrev_b32 v195, 3, v192
    v_and_b32 v196, 3, v1
    v_lshl_add_u32 v195, v195, 2, v196
    v_mul_u32_u24 v196, 800, v193
    v_lshl_add_u32 v196, v195, 1, v196
    v_mov_b32 v197, 2048
    v_cmp_eq_u32 s[90:91], v193, v194
    v_add_u32 v198, 32, v196
    v_cndmask_b32 v196, v197, v196, s[90:91]
    v_cndmask_b32 v198, v197, v198, s[90:91]
    v_cmp_gt_u32 s[90:91], 8, v192
    s_mov_b32 s86, 12288
    v_add_u32 v{aWM}, s86, v196
    v_cndmask_b32 v198, v197, v198, s[90:91]
    v_add_u32 v{aWL}, s86, v198
    """)

W1G = f"s_mov_b32 m0, s89\ns_add_u32 s89, s89, 4096\nbuffer_load_dwordx4 v2, {SW1}, s88 offen{SC} lds\ns_add_u32 s88, s88, 4096"

def woreg(T, st):
    k = 5 * T + st
    return ar(160 + 4 * k, 4) if k < 24 else vr(WO25, 4)
def wo_groups():
    g = []
    for T in range(5):
        for st in range(5):
            pre = f"s_add_u32 s98, s92, {T*20480 + (st//4)*4096}\n" if st % 4 == 0 else ""
            g.append((pre + f"buffer_load_dwordx4 {woreg(T,st)}, v2, {SWS}, s98 offen offset:{(st%4)*1024}{SC}", "wo"))
    return g
def w2reg(step, T):
    k = step * 5 + T
    return ar(4 * k, 4) if k < 64 else vr(216 + 4 * (k - 64), 4)
def w2_groups(k0, k1):
    items = sorted(((k % 5, k // 5) for k in range(k0, k1)), key=lambda e: (e[1] // 2, e[0], e[1]))
    g = []; cur = None
    for T, st in items:
        key = (T, st // 4)
        pre = f"s_add_u32 s99, s93, {T*55296 + (st//4)*4096}\n"
        cur = key
        g.append((pre + f"buffer_load_dwordx4 {w2reg(st,T)}, v2, {SWS}, s99 offen offset:{(st%4)*1024}{SC}", f"w2_{st//2}"))
    return g

def touch(A, srd, soff, nlines, junk=234):
    for k in range(0, nlines, 64):
        n = min(64, nlines - k)
        A(f"v_min_u32 v235, {n-1}, v1\nv_lshlrev_b32 v235, 7, v235")
        if k: A(f"s_add_u32 {soff}, {soff}, 8192")
        A(f"buffer_load_dword v{junk}, v235, {srd}, {soff} offen{SC}", "touch")

def touch_w1_wo(A):
    A(f"""
    s_and_b32 s55, {sR}, 3
    s_lshl2_add_u32 s56, s55, {sWAVE}
    s_mul_i32 s56, s56, 8960
    s_mul_i32 s57, {sC}, 143360
    s_add_u32 s56, s56, s57
    s_and_b32 s57, {sC}, 1
    s_lshl1_add_u32 s55, s55, s57
    s_lshl2_add_u32 s55, s55, {sWAVE}
    s_lshr_b32 s57, {sC}, 1
    s_mul_i32 s18, s55, 8640
    s_mul_i32 s19, s57, 276480
    s_add_u32 s18, s18, s19
    s_add_u32 s18, s18, {W2}
    s_mul_i32 s55, s55, 3200
    s_mul_i32 s57, s57, 102400
    s_add_u32 s55, s55, s57
    s_add_u32 s55, s55, {WO}
    """)
    touch(A, SWS, "s55", 25)
    touch(A, SW1, "s56", 70)

def softmax_routine(A, ndma):
    A("L_smx:\ns_nop 1")
    body = []
    B = body.append
    for u in range(3):
        A(f"v_mfma_f32_32x32x16_bf16 {vr(PP,16)}, {vr(WM+4*u,4)}, {vr(U+4*u,4)}, {'0' if u==0 else vr(PP,16)}")
    for u in range(3):
        A(f"v_mfma_f32_32x32x16_bf16 {vr(PL,16)}, {vr(WLf+4*u,4)}, {vr(U+4*u,4)}, {'0' if u==0 else vr(PL,16)}")
    def site():
        l = A.label('ns')
        A(f's_cbranch_vccz {l}\n{W1G}\n{l}:')
    site()
    p = [PP + i for i in range(20)]
    for k in range(4):
        B(f"v_max3_f32 v{TM+k}, v{p[4*k]}, v{p[4*k+1]}, v{p[4*k+2]}")
        B(f"v_min3_f32 v{TM+4+k}, v{p[4*k]}, v{p[4*k+1]}, v{p[4*k+2]}")
    for k in range(4):
        B(f"v_max3_f32 v{TM+k}, v{TM+k}, v{p[4*k+3]}, v{p[16+k]}")
        B(f"v_min3_f32 v{TM+4+k}, v{TM+4+k}, v{p[4*k+3]}, v{p[16+k]}")
    B(f"v_max3_f32 v{TM}, v{TM}, v{TM+1}, v{TM+2}")
    B(f"v_min3_f32 v{TM+4}, v{TM+4}, v{TM+5}, v{TM+6}")
    B(f"v_max_f32 v{TM}, v{TM}, v{TM+3}")
    B(f"v_min_f32 v{TM+4}, v{TM+4}, v{TM+7}")
    B(f"v_mul_f32 v{TM+8}, v{LSC}, v{TM}")
    B(f"v_mul_f32 v{TM+10}, v{LSC}, v{TM+4}")
    for i in range(0, 20, 2):
        B(f"v_pk_fma_f32 {vr(EP+i,2)}, {vr(PP+i,2)}, {vr(LSC,2)}, {vr(TM+8,2)} op_sel_hi:[1,0,0] neg_lo:[0,0,1] neg_hi:[0,0,1]")
    for i in range(0, 20, 2):
        B(f"v_pk_fma_f32 {vr(EN+i,2)}, {vr(PP+i,2)}, {vr(LSC,2)}, {vr(TM+10,2)} op_sel_hi:[1,0,0] neg_lo:[1,0,0] neg_hi:[1,0,0]")
    for i in range(40):
        B(f"v_exp_f32 v{EP+i}, v{EP+i}")
    ET = ((EP, TM), (EN, TM + 6))
    for E, t in ET:
        B(f"v_pk_add_f32 {vr(t,2)}, {vr(E,2)}, {vr(E+2,2)}")
        B(f"v_pk_add_f32 {vr(t+2,2)}, {vr(E+4,2)}, {vr(E+6,2)}")
        B(f"v_pk_add_f32 {vr(t+4,2)}, {vr(E+8,2)}, {vr(E+10,2)}")
    for E, t in ET:
        B(f"v_pk_add_f32 {vr(t,2)}, {vr(t,2)}, {vr(E+12,2)}")
        B(f"v_pk_add_f32 {vr(t+2,2)}, {vr(t+2,2)}, {vr(E+14,2)}")
        B(f"v_pk_add_f32 {vr(t+4,2)}, {vr(t+4,2)}, {vr(E+16,2)}")
    for E, t in ET:
        B(f"v_pk_add_f32 {vr(t,2)}, {vr(t,2)}, {vr(E+18,2)}")
        B(f"v_pk_add_f32 {vr(t+2,2)}, {vr(t+2,2)}, {vr(t+4,2)}")
    for E, t in ET: B(f"v_pk_add_f32 {vr(t,2)}, {vr(t,2)}, {vr(t+2,2)}")
    for E, t in ET: B(f"v_add_f32 v{t}, v{t}, v{t+1}")
    for E, t in ET: B(f"v_rcp_f32 v{t}, v{t}")
    for E, t in ET:
        for i in range(0, 20, 2):
            B(f"v_pk_mul_f32 {vr(E+i,2)}, {vr(E+i,2)}, {vr(t,2)} op_sel_hi:[1,0]")
    for i in range(20):
        B(f"v_cvt_pk_bf16_f32 v{PH+i}, v{EP+2*i}, v{EP+2*i+1}")
    step = len(body) // max(ndma - 1, 1)
    left = ndma - 1
    for i, l in enumerate(body):
        A(l)
        if left and i % step == step - 1:
            site(); left -= 1
    while left: site(); left -= 1
    A("s_setpc_b64 s[80:81]")

NSMX = 6
cfg_f5pos = [40]
def call_smx(A, dma):
    A("s_call_b64 s[80:81], L_smx\ns_nop 1")
    if dma:
        for _ in range(NSMX): A.vm.append(("w1", True))

def lds_base(off):
    return ("v2", "v3", "v4")[off >> 16], off & 0xffff

def half_store(A, src, t, vspl, soff, off, tag):
    A(f"""
    v_mov_b32 v{t}, v{src}
    v_mov_b32 v{t+1}, v{src+1}
    v_mov_b32 v{t+2}, v{src}
    v_mov_b32 v{t+3}, v{src+1}
    v_permlane16_swap_b32 v{t}, v{t+2}
    v_permlane16_swap_b32 v{t+1}, v{t+3}
    s_mov_b32 exec_lo, 0xffff
    s_mov_b32 exec_hi, 0xffff
    """)
    A(f"buffer_store_dwordx4 {vr(t,4)}, {vspl}, {SWS}, {soff} offen offset:{off}{SC}", tag)
    A("s_mov_b64 exec, -1")

def phase_A(A, cfg):
    A("; ---- phase A ----")
    WL = f"buffer_load_dwordx4 v2, {SWS}, s53 offen{SC} lds\ns_add_u32 m0, m0, 4096\ns_add_u32 s53, s53, 4096"
    WL3 = WL + "\ns_cmp_ge_u32 s53, s101\ns_cselect_b32 s55, 122880, 0\ns_sub_u32 s53, s53, s55"
    WQL = f"buffer_load_dwordx4 v2, {SWS}, s100 offen{SC} lds\ns_add_u32 m0, m0, 4096\ns_add_u32 s100, s100, 4096\ns_add_u32 s55, s101, 40960\ns_cmp_ge_u32 s100, s55\ns_cselect_b32 s55, 40960, 0\ns_sub_u32 s100, s100, s55"
    def blk3(b): return [(WL, f"b{b}"), (WL, f"b{b}"), (WL3, f"b{b}")]
    if getattr(cfg, "hotA", 0): A("s_mov_b32 s53, s7\ns_mov_b32 s101, 122880\ns_add_u32 s100, s7, 122880")
    A("s_mov_b32 m0, s7")
    AHEAD = cfg.aheadA
    NS = cfg.nself
    def xl(b):
        return [(f"s_add_u32 s56, s16, {b*4096}\nbuffer_load_dwordx4 {ar(16*b,4)}, v2, {SWS}, s56 offen{SC}", f"b{b}")] + \
               [(f"buffer_load_dwordx4 {ar(16*b+4*i,4)}, v2, {SWS}, s56 offen offset:{i*1024}{SC}", f"b{b}") for i in range(1, 4)]
    stream = []
    for b in range(10): stream += (blk3(b) + (xl(b) if b >= NS else []))
    n_crit = len(stream)
    stream += [(WQL, "tq")] * 10
    A("s_nop 0")
    for _ in range(3): A(*stream.pop(0))
    A(f"buffer_load_dwordx2 v[122:123], v120, {SWS}, s17 offen{SC}", "cs")
    for i in range(2):
        A(f"buffer_load_dwordx4 {vr(124+4*i,4)}, v2, {SWS}, s54 offen offset:{i*1024}{SC}", "cs")
    for _ in range(cfg.a_first - 3): A(*stream.pop(0))
    if cfg.side_pr == 2: side_process(A)
    accs = (ACK, ACV, ACL)
    def reads(blk):
        buf = WA0 if blk % 2 == 0 else WA1
        out = []
        for j in range(12):
            b, o = lds_base((12 * blk + j) * 1024)
            out.append(f"ds_read_b128 {ar(buf+4*j,4)}, {b} offset:{o}")
        return out
    side = []
    for i in range(1, 2):
        side += [f"v_add_f32 v{124+j}, v{124+j}, v{124+4*i+j}" for j in range(4)]
    side += [f"v_mov_b32 v{128+j}, v{124+j}" for j in range(4)]
    side += [f"v_permlane32_swap_b32 v{124+j}, v{128+j}" for j in range(4)]
    side += [f"v_add_f32 v{124+j}, v{124+j}, v{128+j}" for j in range(4)]
    side += ["ds_write_b128 v235, v[124:127]"]
    side += [f"v_mov_b32 v{RSTD}, v123", f"v_mul_f32 v{LSC}, s84, v123", "v_cmp_gt_u32 vcc, 32, v1", "v_cndmask_b32 v122, 0, v122, vcc",
             f"v_cvt_pk_bf16_f32 v{MF}, v122, v122", f"v_lshlrev_b32 v123, 16, v{MF}", "v_sub_f32 v123, v122, v123", f"v_cvt_pk_bf16_f32 v{MF+1}, v123, 0",
             f"v_mov_b32 v{MF+2}, 0", f"v_mov_b32 v{MF+3}, 0"]
    side2 = [f"ds_read_b32 v{124+4*w+T}, v240 offset:{w*512+T*128}" for w in range(4) for T in range(4)]
    side3 = [f"v_add_f32 v{124+T}, v{124+T}, v{124+4*w+T}" for w in range(1, 4) for T in range(4)]
    for T in range(4):
        F = CSF + 4 * T
        side3 += [f"v_cvt_pk_bf16_f32 v{F+1}, v{124+T}, 0", f"v_lshlrev_b32 v{128+T}, 16, v{F+1}", f"v_sub_f32 v{128+T}, v{124+T}, v{128+T}",
                  f"v_cvt_pk_bf16_f32 v{F}, v{124+T}, v{128+T}", f"v_mov_b32 v{F+2}, 0", f"v_mov_b32 v{F+3}, 0"]
    stamp(A, cfg, 7)
    A.wait("b0"); A("s_barrier")
    stamp(A, cfg, 8)
    lchk, lslow = A.label("chk"), A.label("slow")
    sig5 = [False]
    D = 9
    def rd(f):
        b, o = lds_base(f * 1024)
        return f"ds_read_b128 {ar(160+4*(f%24),4)}, {b} offset:{o}"
    for f in range(D): A(rd(f))
    for blk in range(10):
        take = min(len(stream), cfg.a_rate) if blk < 9 else len(stream)
        while take < len(stream) and any(tg in (f"b{blk+1}", f"b{blk+2}") for t, tg in stream[take:]): take += 1
        if blk < 7: take = min(take, sum(1 for t, tg in stream if tg != "tq"))
        A.bg += stream[:take]; stream = stream[take:]
        if blk == 1: A.wait("cs")
        sw = side if blk in (1, 2) else side2 if blk == 4 else side3 if blk in (6, 7) else []
        flat = []
        for t, tg in A.bg:
            ls = t.split("\n")
            c = [i for i, l in enumerate(ls) if l.startswith("s_cmp")]
            if c: ls = ls[:c[0]] + ["\n".join(ls[c[0]:])]
            flat += [(l, tg) for l in ls]
        A.bg = []
        other = [(sw.pop(0), None) for _ in range(min(len(sw), 24))]
        if blk == 8: flat = [(f"v_lshlrev_b32 v6, 7, v1", None), (f"s_mov_b32 s58, {FLG + 5*8192}", None), (f"buffer_load_dwordx4 v[196:199], v6, {SWS}, s58 offen sc1", "f5")] + flat
        for j in range(12):
            f = 12 * blk + j
            s = 4 * blk + j // 3
            acc = accs[j % 3]
            if (f + D) % 12 == 0 and f + D < 120:
                assert A.vm_after(f"b{(f+D)//12}") is not None or True
                A.wait(f"b{(f+D)//12}"); A("s_barrier")
                if not sig5[0] and A.vm_after("sst") is not None and A.vm_after("sst") > A.vm_after(f"b{(f+D)//12}"):
                    signal_global(A, 5); sig5[0] = True
            if f % 2 == 0: A(f"s_waitcnt lgkmcnt({max(0, min(D - 2, 118 - f))})")
            A(f"v_mfma_f32_32x32x16_bf16 {vr(acc,16)}, {ar(160+4*(f%24),4)}, {ar(4*s,4)}, {'0' if s==0 else vr(acc,16)}")
            if f + D < 120: A(rd(f + D))
            if f == 114:
                A.wait("f5", "lgkmcnt(0)")
                A.cond += 1
                A(f"""
                s_cmp_lg_u32 {sWAVE}, 0
                s_cbranch_scc1 {lchk}
                v_xor_b32 v196, {sNONCE}, v196
                v_xor_b32 v197, {sNONCE}, v197
                v_xor_b32 v198, {sNONCE}, v198
                v_xor_b32 v199, {sNONCE}, v199
                v_or3_b32 v196, v196, v197, v198
                v_or_b32 v196, v196, v199
                v_cmp_ne_u32 vcc, 0, v196
                s_cbranch_vccz {lchk}
                """)
                poll_global(A, 5, 196)
                A(f"{lchk}:")
                A.cond -= 1
                stamp(A, cfg, 9)
                A("s_barrier")
                if cfg.warm: touch_w1_wo(A)
            for lst in (flat, other):
                n = -(-len(lst) // (12 - j)) if f < 108 else (-(-len(lst) // (114 - f)) if f < 114 else len(lst))
                for _ in range(n):
                    l, tg = lst.pop(0); A(l, tg)
    assert sig5[0] and not stream
    assert not A.bg and not side and not side2 and not side3
    for T in range(3):
        A(f"v_mfma_f32_32x32x16_bf16 {vr(accs[T],16)}, {vr(CSF+4*T,4)}, {vr(MF,4)}, {vr(accs[T],16)}")
    stamp(A, cfg, 12)
    A(f"""
    v_mov_b32 v{U+10}, 0
    v_mov_b32 v{U+11}, 0
    v_mov_b32 v{VV+10}, 0x3f80
    v_mov_b32 v{VV+11}, 0
    """)
    A.bg += wo_groups() + [(W1G, "w1")] * (25 - (1 if cfg.warm else 2) * NSMX)
    A.pace(cfg.iv_k, cfg.n_k)
    for ch in range(1, 8): A(f"v_xor_b32 v{96+ch}, {ch*16}, v{aPKW}")
    for i in range(8): A(f"v_cvt_pk_bf16_f32 v{U+i}, v{ACK+2*i}, v{ACK+2*i+1}")
    for i in range(8): A(f"v_pk_mul_f32 {vr(ACV+2*i,2)}, {vr(ACV+2*i,2)}, {vr(RSTD,2)} op_sel_hi:[1,0]")
    for i in range(8): A(f"v_cvt_pk_bf16_f32 v{VV+i}, v{ACV+2*i}, v{ACV+2*i+1}")
    A(f"""
    v_cvt_pk_bf16_f32 v{U+8}, v{ACL+4}, v{ACL+5}
    v_cvt_pk_bf16_f32 v{U+9}, v{ACL+6}, v{ACL+7}
    v_pk_mul_f32 {vr(ACL+8,2)}, {vr(ACL+8,2)}, {vr(RSTD,2)} op_sel_hi:[1,0]
    v_pk_mul_f32 {vr(ACL+10,2)}, {vr(ACL+10,2)}, {vr(RSTD,2)} op_sel_hi:[1,0]
    v_cvt_pk_bf16_f32 v{QL}, v{ACL}, v{ACL+1}
    v_cvt_pk_bf16_f32 v{QL+1}, v{ACL+2}, v{ACL+3}
    v_cvt_pk_bf16_f32 v{VV+8}, v{ACL+8}, v{ACL+9}
    v_cvt_pk_bf16_f32 v{VV+9}, v{ACL+10}, v{ACL+11}
    """)
    for ch in range(5, 8): A(f"ds_write_b128 v{96+ch}, {vr(VV+4*(ch-5),4)}")
    A.pace(0)
    A(f"s_mov_b64 vcc, {0 if cfg.warm else -1}")
    call_smx(A, not cfg.warm)
    for ch in range(5):
        A(f"ds_write_b128 v{aPKW if ch == 0 else 96+ch}, {vr(PH+4*ch,4)}")
    A.wait("tq", "lgkmcnt(0)")
    A("s_barrier")
    for s in range(8):
        b = 112 + 8 * s
        A(f"ds_read_b64_tr_b16 {vr(b,2)}, v{aTRA0} offset:{s*2048}")
        A(f"ds_read_b64_tr_b16 {vr(b+2,2)}, v{aTRA1} offset:{s*2048+512}")
        A(f"ds_read_b64_tr_b16 {vr(b+4,2)}, v{aTRB0} offset:{s*2048}")
        A(f"ds_read_b64_tr_b16 {vr(b+6,2)}, v{aTRB1} offset:{s*2048+512}")
        if s >= 2:
            t = s - 2
            A("s_waitcnt lgkmcnt(8)")
            A(f"v_mfma_f32_32x32x16_bf16 {vr(48,16)}, {vr(112+8*t,4)}, {vr(116+8*t,4)}, {'0' if t==0 else vr(48,16)}")
    for t in (6, 7):
        A(f"s_waitcnt lgkmcnt({4 if t==6 else 0})")
        A(f"v_mfma_f32_32x32x16_bf16 {vr(48,16)}, {vr(112+8*t,4)}, {vr(116+8*t,4)}, {vr(48,16)}")
    P2 = 176
    for s in range(8):
        b, o = lds_base((120 + s) * 1024)
        A(f"ds_read_b128 {vr(P2+4*(s%10),4)}, {b} offset:{o}")
    lsk = A.label("kvst")
    A(f"s_cmp_eq_u32 s6, 1\ns_mov_b32 s55, 0xffffff\ns_cselect_b32 s56, 0, s55")
    for i in range(8): A(f"v_cvt_pk_bf16_f32 v{48+i}, v{48+2*i}, v{49+2*i}")
    A("v_permlane32_swap_b32 v48, v50\nv_permlane32_swap_b32 v49, v51\nv_permlane32_swap_b32 v52, v54\nv_permlane32_swap_b32 v53, v55")
    A("s_mov_b32 exec_lo, s55\ns_mov_b32 exec_hi, s56")
    A(f"buffer_store_dwordx4 {vr(48,4)}, v{aKVS}, {SWS}, s3 offen sc1", "kvp")
    A.cond += 1
    A(f"s_cbranch_scc1 {lsk}")
    A(f"buffer_store_dwordx4 {vr(52,4)}, v{aKVS}, {SWS}, s3 offen offset:768 sc1", "kvp")
    A(f"{lsk}:")
    A.cond -= 1
    A("s_mov_b64 exec, -1")
    stamp(A, cfg, 13)
    SIG = cfg.p2sig
    if cfg.p2from0: A.pace(cfg.iv_p2, cfg.n_p2)
    for s in range(40):
        if s == SIG:
            signal_group(A, 1, sCA, sRA, "kvp")
            stamp(A, cfg, 14)
            if cfg.warm:
                iv = (A.pace_iv, A.pace_max); A.pace(0)
                touch(A, SWS, "s18", 69)
                A.pace(*iv)
            if not cfg.p2from0: A.pace(cfg.iv_p2, cfg.n_p2)
        A(f"s_waitcnt lgkmcnt({min(7, 39-s)})")
        A(f"v_mfma_f32_32x32x16_bf16 {vr(ACQ,16)}, {vr(P2+4*(s%10),4)}, {ar(4*s,4)}, {'0' if s==0 else vr(ACQ,16)}")
        if s + 8 < 40:
            b, o = lds_base((120 + s + 8) * 1024)
            A(f"ds_read_b128 {vr(P2+4*((s+8)%10),4)}, {b} offset:{o}")
    A(f"v_mfma_f32_32x32x16_bf16 {vr(ACQ,16)}, {vr(CSF+12,4)}, {vr(MF,4)}, {vr(ACQ,16)}")
    A.pace(0)
    A.bg += w2_groups(0, 40)
    stamp(A, cfg, 15)
    A(f"""
    s_barrier
    v_mov_b32 v32, 0
    v_mov_b32 v33, 0
    v_mov_b32 v{U+8}, v{QL}
    v_mov_b32 v{U+9}, v{QL+1}
    v_mov_b32 v{U+10}, 0
    v_mov_b32 v{U+11}, 0
    """)
    for k in range(5): A(f"ds_write_b64 v{aZ}, v[32:33] offset:{8*k}")
    for i in range(8): A(f"v_cvt_pk_bf16_f32 v{U+i}, v{ACQ+2*i}, v{ACQ+2*i+1}")
    A("s_mov_b64 vcc, -1")
    call_smx(A, True)
    for j in range(8): A(f"v_mov_b32 v{32+j}, 0")
    A(f"s_mov_b32 s86, 0x3f80\ns_mov_b32 s87, 0x3f800000\ns_waitcnt lgkmcnt(0)")
    A.sprinkle(cfg.n_q)
    stamp(A, cfg, 16)
    wait_group(A, 1, sCA)
    stamp(A, cfg, 17)
    RB = 40
    for p in range(16):
        A(f"buffer_load_dwordx4 {vr(RB+4*p,4)}, v{aKVL}, {SWS}, s4 offen sc1", f"p{p}")
        if p < 15: A("s_add_u32 s4, s4, 3840")
    A.sprinkle(cfg.n_red)
    for p in range(16):
        A.wait(f"p{p}")
        for j in range(4):
            A(f"v_dot2c_f32_bf16 v{32+2*j}, s86, v{RB+4*p+j}\nv_dot2c_f32_bf16 v{33+2*j}, s87, v{RB+4*p+j}")
    for j in range(4): A(f"v_cvt_pk_bf16_f32 v{RB+j}, v{32+2*j}, v{33+2*j}")
    A(f"""
    ds_write_b128 v{aKVF}, {vr(RB,4)}
    s_waitcnt lgkmcnt(0)
    s_barrier
    """)
    stamp(A, cfg, 18)
    b, o = lds_base(KVF_LDS)
    for i in (0, 5, 1, 6, 2, 7, 3, 8, 4, 9): A(f"ds_read_b128 {vr(40+4*i,4)}, {b} offset:{o + i*1024}")
    for s5 in range(5):
        for tau in range(2):
            i = tau * 5 + s5
            A(f"s_waitcnt lgkmcnt({9-2*s5-tau})")
            A(f"v_mfma_f32_32x32x16_bf16 {vr(96+16*tau,16)}, {vr(40+4*i,4)}, {vr(PH+4*s5,4)}, {'0' if s5==0 else vr(96+16*tau,16)}")
    A(f"v_add_f32 v34, 0x358637bd, v{96+20}\nv_rcp_f32 v34, v34")
    for i in range(0, 20, 2):
        A(f"v_pk_mul_f32 {vr(96+i,2)}, {vr(96+i,2)}, v[34:35] op_sel_hi:[1,0]")
    for i in range(10): A(f"v_cvt_pk_bf16_f32 v{40+i}, v{96+2*i}, v{97+2*i}")
    A(f"buffer_store_dwordx4 v[40:43], v{aOST}, {SWS}, s5 offen{SC}\nbuffer_store_dwordx4 v[44:47], v{aOST}, {SWS}, s5 offen offset:256{SC}", "o")
    A("v_permlane32_swap_b32 v48, v50\nv_permlane32_swap_b32 v49, v51\ns_mov_b64 exec, 0xffffffff")
    A(f"buffer_store_dwordx4 v[48:51], v{aOST}, {SWS}, s5 offen offset:512{SC}", "o")
    A("s_mov_b64 exec, -1")
    stamp(A, cfg, 19)

BRED_LDS = 100 * 1024
CF1 = 180
def phase_B(A, cfg):
    OFR, ACC = 8, 88
    A("; ---- phase B ----")
    A(f"""
    s_lshr_b32 s62, {sC}, 1
    s_and_b32 s63, {sC}, 1
    s_lshl_b32 s64, {sR}, 3
    s_lshl_b32 s55, s63, 2
    s_add_u32 s64, s64, s55
    s_add_u32 s65, s64, {sWAVE}
    s_mul_i32 s61, s65, 20480
    s_mul_i32 s55, s62, 160
    s_add_u32 s61, s61, s55
    v_and_b32 v8, 15, v1
    v_lshrrev_b32 v9, 4, v1
    v_mul_u32_u24 v8, 1280, v8
    v_lshl_add_u32 v8, v9, 3, v8
    """)
    signal_group(A, 2, sRA, sCA, "o", cfg.mapA == cfg.mapB)
    stamp(A, cfg, 20)
    for T in range(5):
        A(f"buffer_load_dwordx2 {vr(XR+2*T,2)}, v8, {SX}, s61 offen offset:{T*32}", "xr")
    must = sum(1 for t, tg in A.bg if tg in ("wo", "w1"))
    A.sprinkle(max(must, cfg.n_h2))
    for i in range(4):
        A(f"""
        s_add_u32 s55, {sWAVE}, {i}
        s_and_b32 s55, s55, 3
        s_add_u32 s56, s55, s64
        s_mul_i32 s{66+i}, s56, 20480
        s_mul_i32 s56, {sWAVE}, 5120
        s_add_u32 s{66+i}, s{66+i}, s56
        s_add_u32 s{66+i}, s{66+i}, {OF}
        s_mul_i32 s55, s55, 15360
        s_add_u32 s55, s55, {BRED_LDS + max(i-1,0)*5120}
        v_add_u32 v{168+i}, s55, v2
        """)
    A(f"""
    s_mul_i32 s60, s65, 20480
    s_lshr_b32 s55, s62, 1
    s_mul_i32 s55, s55, 5120
    s_add_u32 s60, s60, s55
    s_add_u32 s60, s60, {HF}
    s_lshl_b32 s61, s65, 10
    s_lshl_b32 s55, s62, 7
    s_add_u32 s61, s61, s55
    s_add_u32 s61, s61, {STT}
    v_lshlrev_b32 v172, 3, v1
    v_and_b32 v173, 15, v1
    v_lshrrev_b32 v174, 5, v1
    v_lshlrev_b32 v173, 4, v173
    v_lshl_add_u32 v173, v174, 8, v173
    """)
    stamp(A, cfg, 24)
    wait_group(A, 2, sR)
    stamp(A, cfg, 21)
    def oload(st, i):
        if getattr(cfg, "noload", 0): return
        if st < 4:
            A(f"buffer_load_dwordx4 {vr(OFR+4*(4*st+i),4)}, v2, {SWS}, s{66+i} offen offset:{st*1024}{SC}", f"o{st}{i}")
        else:
            A(f"s_add_u32 s55, s{66+i}, 4096\nbuffer_load_dwordx4 {vr(OFR+4*(4*st+i),4)}, v2, {SWS}, s55 offen{SC}", f"o{st}{i}")
    order = [(st, i) for st in range(5) for i in (1, 2, 3)] + [(st, 0) for st in range(5)]
    W = cfg.aheadB
    for e in order[:W]: oload(*e)
    wr = [(i, T) for i in (1, 2, 3) for T in range(5)]
    for n, (st, i) in enumerate(order):
        A.wait(f"o{st}{i}")
        for T in range(5):
            acc = vr(ACC + 4 * (5 * i + T), 4)
            A(f"v_mfma_f32_16x16x32_bf16 {acc}, {woreg(T,st)}, {vr(OFR+4*(4*st+i),4)}, {'0' if st==0 else acc}")
            if T == 1 and n + W < len(order): oload(*order[n + W])
            if i == 0 and (5 * st + T) >= 2 and wr and (5 * st + T) % 3 != 0:
                wi, wT = wr.pop(0)
                A(f"ds_write_b128 v{168+wi}, {vr(ACC+4*(5*wi+wT),4)} offset:{wT*1024}")
    for wi, wT in wr: A(f"ds_write_b128 v{168+wi}, {vr(ACC+4*(5*wi+wT),4)} offset:{wT*1024}")
    stamp(A, cfg, 22)
    A.sprinkle(cfg.n_b)
    for T in range(5):
        A(f"v_lshlrev_b32 v{68+4*(T%2)}, 16, v{XR+2*T}\nv_and_b32 v{69+4*(T%2)}, 0xffff0000, v{XR+2*T}")
        A(f"v_lshlrev_b32 v{70+4*(T%2)}, 16, v{XR+2*T+1}\nv_and_b32 v{71+4*(T%2)}, 0xffff0000, v{XR+2*T+1}")
        A(f"v_pk_add_f32 {vr(ACC+4*T,2)}, {vr(ACC+4*T,2)}, {vr(68+4*(T%2),2)}")
        A(f"v_pk_add_f32 {vr(ACC+4*T+2,2)}, {vr(ACC+4*T+2,2)}, {vr(70+4*(T%2),2)}")
    A("s_waitcnt lgkmcnt(0)\ns_barrier")
    for k in range(15): A(f"ds_read_b128 {vr(8+4*k,4)}, v168 offset:{k*1024}")
    for k in range(15):
        T = k % 5
        A(f"s_waitcnt lgkmcnt({14-k})")
        A(f"v_pk_add_f32 {vr(ACC+4*T,2)}, {vr(ACC+4*T,2)}, {vr(8+4*k,2)}")
        A(f"v_pk_add_f32 {vr(ACC+4*T+2,2)}, {vr(ACC+4*T+2,2)}, {vr(10+4*k,2)}")
    for i in range(10): A(f"v_cvt_pk_bf16_f32 v{HK+i}, v{ACC+2*i}, v{ACC+2*i+1}")
    lo, le = A.label("odd"), A.label("se")
    A.cond += 1
    A(f"s_bitcmp1_b32 s62, 0\ns_cbranch_scc1 {lo}")
    for k in range(2): A(f"buffer_store_dwordx4 {vr(HK+4*k,4)}, v2, {SWS}, s60 offen offset:{k*1024}{SC}", "h")
    half_store(A, HK + 8, 72, "v173", "s60", 2048, "h")
    A(f"s_branch {le}\n{lo}:\ns_add_u32 s56, s60, 4096")
    A(f"buffer_store_dwordx4 {vr(HK+2,4)}, v2, {SWS}, s60 offen offset:3072{SC}\nbuffer_store_dwordx4 {vr(HK+6,4)}, v2, {SWS}, s56 offen{SC}", "h")
    half_store(A, HK, 72, "v173", "s60", 2048 + 512, "h")
    A(f"{le}:")
    A.cond -= 1
    A(f"v_pk_add_f32 v[8:9], {vr(ACC,2)}, {vr(ACC+2,2)}\nv_pk_mul_f32 v[10:11], {vr(ACC,2)}, {vr(ACC,2)}")
    A(f"v_pk_fma_f32 v[10:11], {vr(ACC+2,2)}, {vr(ACC+2,2)}, v[10:11]")
    for i in range(4, 20, 2):
        A(f"v_pk_add_f32 v[8:9], v[8:9], {vr(ACC+i,2)}\nv_pk_fma_f32 v[10:11], {vr(ACC+i,2)}, {vr(ACC+i,2)}, v[10:11]")
    A("v_add_f32 v8, v8, v9\nv_add_f32 v9, v10, v11")
    allreduce_16_32(A, [(8, 10), (9, 11)])
    A("s_mov_b64 exec, 0xffff")
    either(A, lambda E: E(f"buffer_store_dwordx2 v[8:9], v172, {SWS}, s61 offen@"), "h")
    A("s_mov_b64 exec, -1")
    stamp(A, cfg, 23)

WBA, CS_A = 196, 228
def phase_C(A, cfg):
    HFR, ACC, ST = 8, 168, 224
    A("; ---- phase C ----")
    A(f"""
    s_lshl_b32 s64, {sR}, 3
    s_lshl_b32 s55, {sWAVE}, 1
    s_add_u32 s64, s64, s55
    s_mul_i32 s60, s64, 20480
    s_add_u32 s60, s60, {HF}
    s_add_u32 s61, s60, 20480
    s_lshl_b32 s62, s64, 10
    s_add_u32 s62, s62, {STT}
    v_and_b32 v5, 15, v1
    v_lshrrev_b32 v12, 4, v1
    v_lshlrev_b32 v5, 3, v5
    v_lshl_add_u32 v5, v12, 8, v5
    s_mul_i32 s66, s64, 55296
    s_lshr_b32 s55, {sC}, 1
    s_mul_i32 s55, s55, 7168
    s_add_u32 s66, s66, s55
    s_add_u32 s66, s66, {H1F}
    s_add_u32 s67, s66, 55296
    s_add_u32 s68, s66, 4096
    s_add_u32 s69, s67, 4096
    """)
    signal_group(A, 3, sR, sC, "h", True)
    stamp(A, cfg, 30)
    A(f"""
    v_lshrrev_b32 v9, 5, v1
    v_and_b32 v10, 31, v1
    v_min_u32 v10, 27, v10
    v_mul_u32_u24 v9, 6912, v9
    v_lshl_add_u32 v9, v10, 4, v9
    s_mul_i32 s70, {sC}, 448
    s_mul_i32 s55, {sWAVE}, {4*6912}
    s_add_u32 s70, s70, s55
    s_add_u32 s70, s70, {CS1}
    s_add_u32 s71, s70, {2*6912}
    """)
    A(f"buffer_load_dwordx4 v[12:15], v9, {SWS}, s70 offen{SC}\nbuffer_load_dwordx4 v[16:19], v9, {SWS}, s71 offen{SC}", "c1")
    A.bg = [(W1G, "w1b")] * 10 + A.bg + w2_groups(40, 49)
    A.sprinkle(cfg.n_h3)
    A(f"""
    s_lshl_b32 s55, {sWAVE}, 9
    s_add_u32 s55, s55, {HOLE2_LDS}
    v_lshlrev_b32 v10, 4, v10
    v_add_u32 v10, s55, v10
    v_and_b32 v11, 15, v1
    v_lshlrev_b32 v11, 2, v11
    v_add_u32 v241, {HOLE2_LDS}, v11
    """)
    A.wait("c1")
    A("v_pk_add_f32 v[12:13], v[12:13], v[16:17]\nv_pk_add_f32 v[14:15], v[14:15], v[18:19]")
    for j in range(4): A(f"v_mov_b32 v{16+j}, v{12+j}")
    for j in range(4): A(f"v_permlane32_swap_b32 v{12+j}, v{16+j}")
    A("v_pk_add_f32 v[12:13], v[12:13], v[16:17]\nv_pk_add_f32 v[14:15], v[14:15], v[18:19]\nds_write_b128 v10, v[12:15]\ns_waitcnt lgkmcnt(0)")
    stamp(A, cfg, 31)
    wait_group(A, 3, sR)
    if getattr(cfg, "hot", 0): A(f"s_mul_i32 s60, {sWAVE}, 40960\ns_add_u32 s61, s60, 20480")
    stamp(A, cfg, 32)
    def hl(s):
        if getattr(cfg, "noload", 0): return
        for i in range(2):
            A(f"buffer_load_dwordx4 {vr(HFR+8*s+4*i,4)}, v2, {SWS}, s{60+i} offen offset:{(s%4)*1024}{cfg.ld}", f"h{s}")
        if s % 4 == 3 and s < 19: A("s_add_u32 s60, s60, 4096\ns_add_u32 s61, s61, 4096")
    W = cfg.aheadC
    hl(0)
    for i in range(2):
        for j in range(2):
            A(f"buffer_load_dwordx2 {vr(ST+4*i+2*j,2)}, v5, {SWS}, s62 offen offset:{i*1024+j*128}{cfg.ld}", "st")
    for s in range(1, W): hl(s)
    J = cfg.c_join
    seq = [(s, T) for s in range(J) for T in range(5)] + [(s, T) for s in range(J, 20) for T in range(7)] + [(s, T) for s in range(J) for T in (5, 6)]
    KB = 5 * J + 5 - 6
    KT = 140 - 2 * J
    firstuse = {}
    for s, T in seq: firstuse.setdefault(T, s)
    NB = 8
    def rd(k):
        s, T = seq[k]
        b, o = lds_base(T * 20480 + s * 1024)
        A(f"ds_read_b128 {ar(WBA+4*(k%NB),4)}, {b} offset:{o}")
    for k in range(6): rd(k)
    side = [f"v_add_f32 v{ST}, v{ST}, v{ST+2}", f"v_add_f32 v{ST+4}, v{ST+4}, v{ST+6}"]
    pairs = [(ST, ST + 2), (ST + 4, ST + 6)]
    for sw in ("v_permlane16_swap_b32", "v_permlane32_swap_b32"):
        side += [f"v_mov_b32 v{t}, v{v}" for v, t in pairs] + [f"{sw} v{v}, v{t}" for v, t in pairs] + [f"v_add_f32 v{v}, v{v}, v{t}" for v, t in pairs]
    side += ["v_cmp_gt_u32 vcc, 16, v1"]
    for i in range(2):
        v, F = ST + 4 * i, 232 + 4 * i
        side += [f"v_mul_f32 v{v}, 0xbacccccd, v{v}", f"v_cndmask_b32 v{v}, 0, v{v}, vcc", f"v_cvt_pk_bf16_f32 v{F}, v{v}, v{v}", f"v_lshlrev_b32 v{v+1}, 16, v{F}",
                 f"v_sub_f32 v{v+1}, v{v}, v{v+1}", f"v_cvt_pk_bf16_f32 v{F+1}, v{v+1}, 0", f"v_mov_b32 v{F+2}, 0", f"v_mov_b32 v{F+3}, 0"]
    cs_side = []
    for T in range(7):
        cs_side += [f"ds_read_b32 v240, v241 offset:{T*64}\nds_read_b32 v242, v241 offset:{T*64+512}\nds_read_b32 v243, v241 offset:{T*64+1024}\nds_read_b32 v6, v241 offset:{T*64+1536}",
                    None, None, None, None, None, None,
                    "v_add_f32 v240, v240, v242", "v_add_f32 v243, v243, v6", "v_add_f32 v240, v240, v243",
                    "v_cvt_pk_bf16_f32 v242, v240, 0", "v_lshlrev_b32 v243, 16, v242", f"v_accvgpr_write_b32 a{CS_A+4*T+1}, v242\nv_sub_f32 v243, v240, v243",
                    f"v_cvt_pk_bf16_f32 v240, v240, v243\nv_accvgpr_write_b32 a{CS_A+4*T+2}, 0", f"v_accvgpr_write_b32 a{CS_A+4*T}, v240\nv_accvgpr_write_b32 a{CS_A+4*T+3}, 0"]
    PK = lambda i, T: ACC + 28 * i + 2 * T
    early = ["v_and_b32 v7, 15, v1\nv_lshrrev_b32 v6, 5, v1", "v_lshlrev_b32 v7, 4, v7\nv_lshl_add_u32 v7, v6, 8, v7"]
    for i in range(2):
        for T in range(5):
            a = ACC + 4 * (7 * i + T)
            early += [f"v_max_f32 v{a}, 0, v{a}\nv_max_f32 v{a+1}, 0, v{a+1}", f"v_max_f32 v{a+2}, 0, v{a+2}\nv_max_f32 v{a+3}, 0, v{a+3}",
                      f"v_cvt_pk_bf16_f32 v{PK(i,T)}, v{a}, v{a+1}\nv_cvt_pk_bf16_f32 v{PK(i,T)+1}, v{a+2}, v{a+3}"]
    def early_stores():
        lo, le = A.label("eo"), A.label("ee")
        A.cond += 1
        A(f"s_bitcmp1_b32 {sC}, 0\ns_cbranch_scc1 {lo}")
        for i in range(2):
            for kk in range(2): A(f"buffer_store_dwordx4 {vr(PK(i,2*kk),4)}, v2, {SWS}, s{66+i} offen offset:{kk*1024}{SC}", "h1")
        A(f"s_branch {le}\n{lo}:")
        for i in range(2):
            A(f"buffer_store_dwordx4 {vr(PK(i,1),4)}, v2, {SWS}, s{68+i} offen{SC}", "h1")
            half_store(A, PK(i,0), PK(i,7) + (i == 0) * 0, "v7", f"s{66+i}", 3072 + 512, "h1")
        A(f"s_cmp_eq_u32 {sC}, 15\ns_cbranch_scc1 {le}")
        for i in range(2): A(f"buffer_store_dwordx4 {vr(PK(i,3),4)}, v2, {SWS}, s{68+i} offen offset:1024{SC}", "h1")
        A(f"{le}:")
        A.cond -= 1
    for k, (s, T) in enumerate(seq):
        if k == KT:
            assert not side and len(cs_side) <= 30, len(cs_side)
            A.pace(cfg.iv_c2, cfg.n_c2)
            for i in range(2):
                for T5 in range(5):
                    acc = vr(ACC + 4 * (7 * i + T5), 4)
                    A(f"v_mfma_f32_16x16x32_bf16 {acc}, {ar(CS_A+4*T5,4)}, {vr(232+4*i,4)}, {acc}")
        if T == 0: A.wait(f"h{s}")
        if k == KB:
            assert not any(tg == "w1b" for t, tg in A.bg)
            A.wait("w1b"); A("s_barrier")
        if k == 21: A.wait("st")
        if k % 2 == 0: A(f"s_waitcnt lgkmcnt({max(0, min(4, len(seq)-2-k))})")
        for i in range(2):
            acc = vr(ACC + 4 * (7 * i + T), 4)
            A(f"v_mfma_f32_16x16x32_bf16 {acc}, {ar(WBA+4*(k%NB),4)}, {vr(HFR+8*s+4*i,4)}, {'0' if s==firstuse[T] else acc}")
            if i == 0 and k + 6 < len(seq): rd(k + 6)
        if k >= 21 and k % 2 == 1 and side: A(side.pop(0))
        if k >= 2 and cs_side:
            l = cs_side.pop(0)
            if l: A(l)
        if k >= KT + 2 and early and not cs_side:
            A(early.pop(0))
            if k % cfg.e2 == 0 and early: A(early.pop(0))
            if not early: early_stores()
        if T == 1 and s + W < 20: hl(s + W)
        if k == cfg.c_from: A.pace(cfg.iv_c, cfg.n_c)
    A.pace(0)
    if early:
        while early: A(early.pop(0))
        early_stores()
    assert not side and not cs_side and not early
    for i in range(2):
        for T in (5, 6):
            acc = vr(ACC + 4 * (7 * i + T), 4)
            A(f"v_mfma_f32_16x16x32_bf16 {acc}, {ar(CS_A+4*T,4)}, {vr(232+4*i,4)}, {acc}")
    stamp(A, cfg, 33)
    for i in range(2):
        for T in (5, 6):
            for h in range(2):
                a = ACC + 4 * (7 * i + T) + 2 * h
                A(f"v_cvt_pk_bf16_f32 v{PK(i,T)+h}, v{a}, v{a+1}")
        for T in (5, 6):
            for h in range(2): A(f"v_pk_max_i16 v{PK(i,T)+h}, v{PK(i,T)+h}, 0")
    l15, le = A.label("c15"), A.label("ce")
    A.cond += 1
    A(f"s_bitcmp1_b32 {sC}, 0\ns_cbranch_scc1 {l15}")
    for i in range(2):
        A(f"buffer_store_dwordx4 {vr(PK(i,4),4)}, v2, {SWS}, s{66+i} offen offset:2048{SC}", "h1")
        half_store(A, PK(i,6), PK(i,7), "v7", f"s{66+i}", 3072, "h1")
    A(f"s_branch {le}\n{l15}:\ns_cmp_eq_u32 {sC}, 15\ns_cbranch_scc1 {le}")
    for i in range(2):
        A(f"buffer_store_dwordx4 {vr(PK(i,5),4)}, v2, {SWS}, s{68+i} offen offset:2048{SC}", "h1")
    A(f"{le}:")
    A.cond -= 1
    stamp(A, cfg, 34)

def phase_D(A, cfg):
    ACC, HB = 8, 88
    A("; ---- phase D ----")
    lno, lo2, lw = A.label("noopt"), A.label("opt2"), A.label("optw")
    A(f"""
    s_lshr_b32 s62, {sC}, 1
    s_and_b32 s63, {sC}, 1
    s_lshl_b32 s64, {sR}, 3
    s_lshl_b32 s55, s63, 2
    s_add_u32 s64, s64, s55
    """)
    for i in range(4):
        A(f"""
        s_add_u32 s55, {sWAVE}, {i}
        s_and_b32 s55, s55, 3
        s_add_u32 s56, s55, s64
        s_mul_i32 s{66+i}, s56, 55296
        s_add_u32 s{66+i}, s{66+i}, s52
        s_add_u32 s{66+i}, s{66+i}, {H1F}
        s_mul_i32 s55, s55, 15360
        s_add_u32 s55, s55, {max(i-1,0)*5120}
        v_add_u32 v{240+i}, s55, v2
        """)
    A(f"""
    s_add_u32 s55, s64, {sWAVE}
    s_lshl_b32 s61, s55, 10
    s_add_u32 s61, s61, {STT}
    s_mul_i32 s60, s55, 20480
    s_mul_i32 s55, s62, 160
    s_add_u32 s60, s60, s55
    """)
    signal_group(A, 4, sR, sC, "h1", True)
    stamp(A, cfg, 40)
    for j in range(2):
        A(f"buffer_load_dwordx2 {vr(200+2*j,2)}, v5, {SWS}, s61 offen offset:{j*128}{cfg.ld}", "st")
    A.bg += w2_groups(49, 65)
    A.sprinkle(cfg.n_h4)
    A.wait("st")
    A("v_add_f32 v200, v200, v202\nv_add_f32 v201, v201, v203")
    allreduce_16_32(A, [(200, 202), (201, 203)])
    stats_finish(A, 200, 201, 202)
    A("v_mov_b32 v5, v200")
    stamp(A, cfg, 41)
    wait_group(A, 4, sR)
    if getattr(cfg, "hot", 0):
        for i in range(4): A(f"s_add_u32 s{66+i}, s52, {i*55296}")
    stamp(A, cfg, 42)
    def hload(st, i, slot):
        if getattr(cfg, "noload", 0): return
        pre = f"s_add_u32 s55, s{66+i}, {(st//4)*4096}\n" if st >= 4 else ""
        A(pre + f"buffer_load_dwordx4 {vr(HB+4*slot,4)}, v2, {SWS}, {'s55' if st >= 4 else 's%d' % (66+i)} offen offset:{(st%4)*1024}{cfg.ld}", f"g{st}_{i}")
    def mm(st, i, slot, first=False, extra=None):
        for T in range(5):
            acc = vr(ACC + 4 * (5 * i + T), 4)
            A(f"v_mfma_f32_16x16x32_bf16 {acc}, {w2reg(st,T)}, {vr(HB+4*slot,4)}, {'0' if first else acc}")
            if extra: extra(T)
    HOLD = cfg.holdD
    order = []
    for st in range(13):
        order += [(st, i) for i in ((0, 1, 2, 3) if st < 13 - HOLD else (1, 2, 3))]
    n_opt = len(order)
    order += [(st, 0) for st in range(13 - HOLD, 13)]
    NS = 28
    W = cfg.aheadD
    for n in range(W): hload(*order[n], n % NS)
    wr = [(i, T) for i in (1, 2, 3) for T in range(5)]
    cnt = [0]
    addr = []
    addr += ["v_and_b32 v6, 15, v1", "v_lshrrev_b32 v7, 4, v1", "v_mul_u32_u24 v6, 176, v6", "v_lshl_add_u32 v6, v7, 3, v6",
             f"s_mul_i32 s56, {sWAVE}, 3072", "s_add_u32 s56, s56, 65536", "v_add_u32 v6, s56, v6"]
    for n, (st, i) in enumerate(order):
        if n == max(0, n_opt - W):
            A.cond += 1
            A(f"s_cmp_ge_u32 {sWAVE}, 2\ns_cbranch_scc1 {lno}")
            for t, tag in w2_groups(65, 70): A(t, "w2o")
            for ii in range(4): hload(13, ii, 28 + ii)
            A(f"{lno}:")
            A.cond -= 1
        if n == n_opt:
            A.cond += 1
            A(f"s_cmp_ge_u32 {sWAVE}, 2\ns_cbranch_scc1 {lo2}")
            A.wait("g13_3")
            for ii in (1, 2, 3, 0): mm(13, ii, 28 + ii)
            A(f"{lo2}:")
            A.cond -= 1
        while any(tg == f"w2_{st//2}" for t, tg in A.bg): A.sprinkle(1)
        a_, b_ = A.vm_after(f"g{st}_{i}"), A.vm_after(f"w2_{st//2}")
        A.wait(f"w2_{st//2}" if (b_ is not None and (a_ is None or b_ < a_)) else f"g{st}_{i}")
        def extra(T):
            if T == 3 and n % cfg.d_every == 0: A.sprinkle(1)
            if T == 1 and n + W < len(order): hload(*order[n + W], (n + W) % NS)
            if T == 3 and addr and n >= 4: A(addr.pop(0))
            if n >= n_opt:
                cnt[0] += 1
                if cnt[0] >= 3 and cnt[0] % cfg.wr_everyD == 0 and wr:
                    wi, wT = wr.pop(0)
                    A(f"ds_write_b128 v{240+wi}, {vr(ACC+4*(5*wi+wT),4)} offset:{wT*1024}")
        mm(st, i, n % NS, st == 0, extra)
    for wi, wT in wr: A(f"ds_write_b128 v{240+wi}, {vr(ACC+4*(5*wi+wT),4)} offset:{wT*1024}")
    stamp(A, cfg, 43)
    for it in range(3):
        A(f"""
        v_add_u32 v150, {it*64}, v1
        v_mul_u32_u24 v151, 6554, v150
        v_lshrrev_b32 v151, 16, v151
        v_mul_u32_u24 v152, 10, v151
        v_sub_u32 v152, v150, v152
        v_mul_u32_u24 v{154+it}, 176, v151
        v_lshl_add_u32 v{154+it}, v152, 4, v{154+it}
        v_add_u32 v{154+it}, s56, v{154+it}
        v_mul_u32_u24 v{158+it}, 1280, v151
        v_lshl_add_u32 v{158+it}, v152, 4, v{158+it}
        """)
    for i in range(10):
        A(f"v_lshlrev_b32 v{164+2*i}, 16, v{HK+i}\nv_and_b32 v{165+2*i}, 0xffff0000, v{HK+i}")
    A("v_mov_b32 v162, v5\ns_waitcnt lgkmcnt(0)\ns_barrier")
    for k in range(15): A(f"ds_read_b128 {vr(88+4*k,4)}, v240 offset:{k*1024}")
    for k in range(15):
        T = k % 5
        A(f"s_waitcnt lgkmcnt({14-k if k < 10 else 4})" if k <= 10 else f"s_waitcnt lgkmcnt(4)")
        A(f"v_pk_add_f32 {vr(ACC+4*T,2)}, {vr(ACC+4*T,2)}, {vr(88+4*k,2)}")
        A(f"v_pk_add_f32 {vr(ACC+4*T+2,2)}, {vr(ACC+4*T+2,2)}, {vr(90+4*k,2)}")
        if k >= 10:
            A(f"v_pk_fma_f32 {vr(ACC+4*T,2)}, {vr(ACC+4*T,2)}, v[162:163], {vr(164+4*T,2)} op_sel_hi:[1,0,1]")
            A(f"v_pk_fma_f32 {vr(ACC+4*T+2,2)}, {vr(ACC+4*T+2,2)}, v[162:163], {vr(166+4*T,2)} op_sel_hi:[1,0,1]")
            A(f"v_cvt_pk_bf16_f32 v{40+2*T}, v{ACC+4*T}, v{ACC+4*T+1}\nv_cvt_pk_bf16_f32 v{41+2*T}, v{ACC+4*T+2}, v{ACC+4*T+3}")
            A(f"ds_write_b64 v6, {vr(40+2*T,2)} offset:{T*32}")
    A("s_waitcnt lgkmcnt(0)")
    for it in range(3): A(f"ds_read_b128 {vr(52+4*it,4)}, v{154+it}")
    for it in range(3):
        A(f"s_waitcnt lgkmcnt({2-it})")
        if it == 2: A("s_mov_b64 exec, 0xffffffff")
        A(f"buffer_store_dwordx4 {vr(52+4*it,4)}, v{158+it}, {SOUT}, s60 offen{OUTPOL[cfg.outst]}")
    A("s_mov_b64 exec, -1")

def build(cfg):
    global NSMX
    NSMX = cfg.nsmx
    cfg_f5pos[0] = cfg.f5pos
    cfg.ld = {'sc1': ' sc1', 'plain': '', 'nt': ' nt', 'sc0': ' sc0'}.get(cfg.ld, cfg.ld)
    if cfg.mapB != "2x16": cfg.local = 0
    hdr = open("cdna_kernels/" + NAME + ".s.ref").read().split("; Override")[0]
    name = NAME + "_kernel"
    A = Asm()
    ex = "L_exit"
    A(f".text\n.globl {name}\n.p2align 8\n.type {name},@function\n{name}:")
    if cfg.stamps: A(f"v_mov_b32 v{STV}, 0\nv_mov_b32 v{STV+1}, 0")
    stamp(A, cfg, 0)
    prologue(A, cfg, ex)
    phase_P(A, cfg)
    phase_A(A, cfg)
    phase_B(A, cfg)
    phase_C(A, cfg)
    phase_D(A, cfg)
    epoch_advance(A)
    if getattr(cfg, "delay", 0):
        A(f"s_mov_b32 s90, 0\nL_dly:\n" + "v_add_u32 v8, v8, v8\n" * 16 + f"s_add_u32 s90, s90, 1\ns_cmp_lt_u32 s90, {cfg.delay}\ns_cbranch_scc1 L_dly")
    stamp(A, cfg, 62)
    stamp_flush(A, cfg)
    A(f"{ex}:\ns_endpgm")
    softmax_routine(A, NSMX)
    A("L_end:")
    A(f"""
    .section .rodata,"a"
    .p2align 6
    .amdhsa_kernel {name}
    .amdhsa_next_free_vgpr 512
    .amdhsa_next_free_sgpr 102
    .amdhsa_accum_offset 256
    .amdhsa_group_segment_fixed_size 0
    .amdhsa_kernarg_size 80
    .amdhsa_user_sgpr_count 2
    .amdhsa_user_sgpr_kernarg_segment_ptr 1
    .amdhsa_system_sgpr_workgroup_id_x 1
    .end_amdhsa_kernel
    """)
    if getattr(cfg, 'nox2', 0):
        A.items = [it for it in A.items if isinstance(it, str) or not (it.op == 'buffer_store_dwordx2')]
    return hdr + "; @launch grid=(256,1,1) block=(256,1,1) lds=163840\n" + '.amdgcn_target "amdgcn-amd-amdhsa--gfx950"\n' + A.render()

def default_cfg():
    c = Cfg()
    c.outst = 'p'; c.rot = 1; c.warm = 1; c.c_join = 14; c.e2 = 1; c.addr_early = 0; c.nself = 4; c.x_mid = 2; c.side_at = 1; c.side_pr = 1; c.a_first = 12; c.a_rate = 6; c.cpf = 1; c.f5pos = 40; c.p2from0 = 1; c.ld = 'sc1'; c.local = 0; c.aheadA = 4; c.nsmx = 12; c.iv_k = 60; c.n_k = 4; c.p2sig = 12; c.iv_p2 = 80; c.n_p2 = 99
    c.n_q = 8; c.n_red = 10; c.n_h2 = 14; c.n_b = 10; c.n_h3 = 10; c.iv_c2 = 110; c.n_c2 = 99; c.n_h4 = 14; c.d_every = 1; c.aheadB = 12; c.aheadC = 5; c.c_from = 7; c.iv_c = 200; c.n_c = 0
    c.aheadD = 12; c.holdD = 8; c.wr_everyD = 2
    return c

if __name__ == "__main__":
    cfg = default_cfg()
    for a in sys.argv[2:]:
        if "=" in a:
            k, v = a.split("=")
            setattr(cfg, k, int(v) if v.lstrip("-").isdigit() else v)
    cfg.stamps = "stamps" in sys.argv
    dst = sys.argv[1] if len(sys.argv) > 1 else "cdna_kernels/" + NAME + ".s"
    open(dst, "w").write(build(cfg))
    print("wrote", dst)
```
